```python
import torch

def _softmax(x, axis=-1):
    return torch.softmax(x, dim=axis)

def _gelu(x):
    return torch.nn.functional.gelu(x, approximate='tanh')

def _silu(x):
    return torch.nn.functional.silu(x)

def _sigmoid(x):
    return torch.sigmoid(x)

def _layernorm(x, axis=-1, eps=1e-05):
    m = x.mean(dim=axis, keepdim=True)
    v = x.var(dim=axis, keepdim=True, unbiased=False)
    return (x - m) / torch.sqrt(v + eps)

def _scatter_add(tgt, idx, src, axis=0):
    return tgt.clone().index_add_(axis, idx, src)

def _segment_sum(src, seg, n):
    out = torch.zeros((n,) + src.shape[1:], dtype=src.dtype)
    return out.index_add_(0, seg, src)

def _pad(x, pw):
    flat = tuple((v for pair in reversed(pw) for v in pair))
    return torch.nn.functional.pad(x, flat)
kernel_name = 'interleave_layers__sliding_local_dilated__mixer_gmlp__prompt'

def setup_inputs():

    _w = lambda a: (lambda t: t.to(torch.bfloat16) if t.is_floating_point() else t)(torch.as_tensor(a))

    def _A_setup():
        B, S, D = (1, 2048, 512)
        return {'x': _w((lambda *s: torch.randn(*s, dtype=torch.bfloat16) * 0.05)(B, S, D)), 'wqkv': _w((lambda *s: torch.randn(*s, dtype=torch.bfloat16) * 0.1)(D, 3 * D)), 'wo': _w((lambda *s: torch.randn(*s, dtype=torch.bfloat16) * 0.1)(D, D))}
    _A_in = _A_setup()

    def _B_setup():
        B, S, D, F = (1, 2048, 512, 1376)
        Fh = F // 2
        return {'x': _w((lambda *s: torch.randn(*s, dtype=torch.bfloat16) * 0.05)(B, S, D)), 'w_in': _w((lambda *s: torch.randn(*s, dtype=torch.bfloat16) * 0.4)(D, 2 * Fh)), 'w_sp': _w(0.01 * (lambda *s: torch.randn(*s, dtype=torch.bfloat16) * 0.4)(S, S)), 'b_sp': _w(1.0 + 0.01 * (lambda *s: torch.randn(*s, dtype=torch.bfloat16) * 0.05)(S)), 'w_out': _w((lambda *s: torch.randn(*s, dtype=torch.bfloat16) * 0.05)(Fh, D))}
    _B_in = _B_setup()
    return {'A_x': _A_in['x'], 'A_wqkv': _A_in['wqkv'], 'A_wo': _A_in['wo'], 'B_x': _B_in['x'], 'B_w_in': _B_in['w_in'], 'B_w_sp': _B_in['w_sp'], 'B_b_sp': _B_in['b_sp'], 'B_w_out': _B_in['w_out']}

def reference(A_x, A_wqkv, A_wo, B_x, B_w_in, B_w_sp, B_b_sp, B_w_out):

    def _A_ref(x, wqkv, wo):
        B, S, D = x.shape
        H = 32
        Dh = D // H
        W, dil = (8, 2)
        qkv = (lambda x, *d: x.permute(*d))((x @ wqkv).reshape(B, S, 3, H, Dh), 2, 0, 3, 1, 4)
        q, k, v = (qkv[0], qkv[1], qkv[2])
        scale = Dh ** (-0.5)
        pos = torch.arange(S)
        off = torch.arange(W) * dil
        idx = pos[:, None] - off[None, :]
        mask = idx >= 0
        idx_c = torch.where(mask, idx, 0).reshape(-1)
        kg = k[:, :, idx_c, :].reshape(B, H, S, W, Dh)
        vg = v[:, :, idx_c, :].reshape(B, H, S, W, Dh)
        logits = torch.einsum('bhsd,bhswd->bhsw', q, kg) * scale
        logits = torch.where(mask[None, None, :, :], logits, -1000000000.0)
        attn = _softmax(logits, axis=-1)
        o = torch.einsum('bhsw,bhswd->bhsd', attn, vg)
        return (lambda x, *d: x.permute(*d))(o, 0, 2, 1, 3).reshape(B, S, D) @ wo

    def _B_ref(x, w_in, w_sp, b_sp, w_out):
        B, S, D = x.shape
        F = w_in.shape[-1]
        Fh = F // 2
        z = _gelu(torch.einsum('bsd,df->bsf', x, w_in))
        z1 = z[..., :Fh].clone()
        z2 = _layernorm(z[..., Fh:], axis=-1)
        g = torch.einsum('ts,bsf->btf', w_sp, z2) + b_sp[None, :, None]
        return torch.einsum('bsf,fd->bsd', z1 * g, w_out)
    x = A_x
    x = x + _A_ref(_layernorm(x, axis=-1), A_wqkv, A_wo)
    x = x + _B_ref(_layernorm(x, axis=-1), B_w_in, B_w_sp, B_b_sp, B_w_out)
    x = x + _A_ref(_layernorm(x, axis=-1), A_wqkv, A_wo)
    x = x + _B_ref(_layernorm(x, axis=-1), B_w_in, B_w_sp, B_b_sp, B_w_out)
    return x
```

```python
import sys

S, D = 2048, 512
F, FH = 1376, 688
MB = 1 << 20
O_OFF, X1_OFF, X2_OFF, Z_OFF, Z2N_OFF, H_OFF = 0, 2 * MB, 4 * MB, 6 * MB, 12 * MB, 16 * MB
XB = S * D * 2
ZB = S * F * 2
Z2B = S * FH * 2
KA = dict(A_x=0, wqkv=8, wo=16, B_x=24, w_in=32, w_sp=40, b_sp=48, w_out=56, out=64, dbg=72, ws=80)


class K:
    def __init__(self, name):
        self.name = name
        self.L = []
        self.maxv = 0
        self.lbl = 0

    def e(self, s, *a):
        self.L.append('  ' + (s % a if a else s))

    def label(self, n):
        self.L.append(n + ':')

    def newlabel(self, p='L'):
        self.lbl += 1
        return '.%s_%s_%d' % (p, self.name, self.lbl)

    def nop(self, n):
        while n > 0:
            m = min(n, 16)
            self.e('s_nop %d', m - 1)
            n -= m

    def srd(self, sreg, src):
        name, off, nbytes = src
        if off:
            self.e('s_add_u32 s%d, s%d, 0x%x', sreg, sreg, off)
            self.e('s_addc_u32 s%d, s%d, 0', sreg + 1, sreg + 1)
        self.e('s_mov_b32 s%d, 0x%x', sreg + 2, nbytes)
        self.e('s_mov_b32 s%d, 0x00020000', sreg + 3)

    def prologue(self, nwg, srds):
        self.endl = '.Lend_' + self.name
        self.e('s_cmp_ge_u32 s2, %d', nwg)
        self.e('s_cbranch_scc1 %s', self.endl)
        for sreg, src in srds:
            self.e('s_load_dwordx2 s[%d:%d], s[0:1], %d', sreg, sreg + 1, KA[src[0]])
        self.e('s_waitcnt lgkmcnt(0)')
        for sreg, src in srds:
            self.srd(sreg, src)

    def text(self, nvgpr, nsgpr=100):
        out = ['.globl %s' % self.name, '.p2align 8', '.type %s,@function' % self.name, self.name + ':']
        out += self.L
        out += [self.endl + ':', '  s_endpgm']
        acc = (nvgpr + 3) // 4 * 4
        kd = ['.p2align 6', '.amdhsa_kernel %s' % self.name,
              '  .amdhsa_next_free_vgpr %d' % nvgpr, '  .amdhsa_next_free_sgpr %d' % nsgpr,
              '  .amdhsa_accum_offset %d' % acc, '  .amdhsa_group_segment_fixed_size 0',
              '  .amdhsa_kernarg_size 88', '  .amdhsa_user_sgpr_count 2',
              '  .amdhsa_user_sgpr_kernarg_segment_ptr 1', '  .amdhsa_system_sgpr_workgroup_id_x 1',
              '.end_amdhsa_kernel']
        return '\n'.join(out) + '\n', '\n'.join(kd) + '\n'


def vr(a, n):
    return 'v[%d:%d]' % (a, a + n - 1)


def round_bf16(k, dst, src):
    k.e('v_cvt_pk_bf16_f32 v%d, v%d, v%d', dst, src, src)
    k.e('v_lshlrev_b32 v%d, 16, v%d', dst, dst)


def ln_stats(k, vs, vq, inv_n, vm, vr_, t0, t1):
    k.e('v_mul_f32 v%d, 0x%08x, v%d', vs, f2u(inv_n), vs)
    k.e('v_mul_f32 v%d, 0x%08x, v%d', vq, f2u(inv_n), vq)
    k.e('v_fma_f32 v%d, -v%d, v%d, v%d', vq, vs, vs, vq)
    k.e('v_max_f32 v%d, 0, v%d', vq, vq)
    round_bf16(k, vm, vs)
    round_bf16(k, t0, vq)
    k.e('v_add_f32 v%d, 0x%08x, v%d', t0, f2u(1e-5), t0)
    round_bf16(k, t0, t0)
    k.e('v_sqrt_f32 v%d, v%d', t1, t0)
    k.nop(1)
    round_bf16(k, t1, t1)
    k.e('v_rcp_f32 v%d, v%d', vr_, t1)
    k.nop(1)


import struct


def f2u(f):
    return struct.unpack('<I', struct.pack('<f', f))[0]


def decode_wg(k, s_rb, s_cg):
    k.e('s_and_b32 s%d, s2, 7', s_rb)
    k.e('s_lshl_b32 s%d, s%d, 2', s_rb, s_rb)
    k.e('s_lshr_b32 s%d, s2, 3', s_cg)
    k.e('s_and_b32 s%d, s%d, 3', s_cg, s_cg)
    k.e('s_add_u32 s%d, s%d, s%d', s_rb, s_rb, s_cg)
    k.e('s_lshr_b32 s%d, s2, 5', s_cg)


def gelu_inplace(k, x, t0, t1):
    c0 = -2.0 * 0.7978845608028654 * 1.4426950408889634
    c1 = c0 * 0.044715
    k.e('v_mul_f32 v%d, v%d, v%d', t0, x, x)
    k.e('v_fma_f32 v%d, v%d, s%d, v%d', t0, t0, SG_C1, V_C0)
    k.e('v_mul_f32 v%d, v%d, v%d', t0, t0, x)
    k.e('v_exp_f32 v%d, v%d', t0, t0)
    k.nop(1)
    k.e('v_add_f32 v%d, 1.0, v%d', t0, t0)
    k.e('v_rcp_f32 v%d, v%d', t0, t0)
    k.nop(1)
    k.e('v_mul_f32 v%d, v%d, v%d', x, x, t0)


SG_C1 = 40
V_C0 = 31
GELU_C0 = -2.0 * 0.7978845608028654 * 1.4426950408889634
GELU_C1 = GELU_C0 * 0.044715


def gen_lngemm(name, attn, xsrc, wsrc, ldb, osrc):
    k = K(name)
    A_ROWS = 80 if attn else 64
    B_OFF = A_ROWS * 1024
    BST = 24576
    NS = 3
    lds = B_OFF + NS * BST
    SA, SB, SO = 4, 8, 12
    s_rb, s_cg, s_w, s_wr, s_wc, s_mb, s_t0, s_t1, s_start = 16, 17, 18, 19, 20, 21, 22, 23, 24
    k.prologue(256, [(SA, xsrc), (SB, wsrc), (SO, osrc)])
    decode_wg(k, s_rb, s_cg)
    vL, vI, vG = 1, 2, 3
    k.e('v_and_b32 v%d, 63, v0', vL)
    k.e('v_lshrrev_b32 v4, 6, v0')
    k.e('v_and_b32 v%d, 15, v0', vI)
    k.e('v_readfirstlane_b32 s%d, v4', s_w)
    k.e('v_bfe_u32 v%d, v0, 4, 2', vG)
    k.e('s_and_b32 s%d, s%d, 1', s_wr, s_w)
    k.e('s_lshr_b32 s%d, s%d, 1', s_wc, s_w)
    if not attn:
        k.e('s_mul_i32 s%d, s%d, %d', s_start, s_cg, 74 * 9363)
        k.e('s_lshr_b32 s%d, s%d, 16', s_start, s_start)
    vBD = 8
    k.e('s_mul_i32 s%d, s%d, 192', s_t0, s_w)
    k.e('s_mov_b32 s%d, 43691', s_t1)
    for p in range(3):
        sg, kk, c, t, tmp = 32, 33, 34, 35, 36
        k.e('v_add_u32 v%d, s%d, v%d', sg, s_t0, vL)
        if p:
            k.e('v_add_u32 v%d, %d, v%d', sg, 64 * p, sg)
        k.e('v_mul_lo_u32 v%d, v%d, s%d', kk, sg, s_t1)
        k.e('v_lshrrev_b32 v%d, 20, v%d', kk, kk)
        k.e('v_mul_u32_u24 v%d, 24, v%d', c, kk)
        k.e('v_sub_u32 v%d, v%d, v%d', c, sg, c)
        k.e('v_bfe_u32 v%d, v%d, 1, 1', tmp, kk)
        k.e('v_bfe_u32 v%d, v%d, 3, 1', t, kk)
        k.e('v_lshl_add_u32 v%d, v%d, 1, v%d', tmp, t, tmp)
        k.e('v_lshrrev_b32 v%d, 1, v%d', t, c)
        k.e('v_add_u32 v%d, 12, v%d', t, t)
        k.e('v_sub_u32 v%d, v%d, v%d', t, t, tmp)
        k.e('v_subrev_u32 v%d, 12, v%d', tmp, t)
        k.e('v_cmp_le_u32 vcc, 12, v%d', t)
        k.nop(2)
        k.e('v_cndmask_b32 v%d, v%d, v%d, vcc', t, t, tmp)
        k.e('v_and_b32 v%d, 1, v%d', c, c)
        if attn:
            k.e('v_mul_u32_u24 v%d, 11, v%d', tmp, t)
            k.e('v_lshrrev_b32 v%d, 5, v%d', tmp, tmp)
            k.e('v_mul_u32_u24 v%d, 3, v%d', sg, tmp)
            k.e('v_sub_u32 v%d, v%d, v%d', sg, t, sg)
            k.e('v_lshlrev_b32 v%d, 9, v%d', sg, sg)
            k.e('v_lshl_add_u32 v%d, v%d, 4, v%d', sg, tmp, sg)
            k.e('s_lshl_b32 s%d, s%d, 6', s_mb, s_cg)
            k.e('v_add_u32 v%d, s%d, v%d', sg, s_mb, sg)
        else:
            k.e('v_add_u32 v%d, s%d, v%d', sg, s_start, t)
            k.e('v_lshlrev_b32 v%d, 4, v%d', sg, sg)
        k.e('v_lshl_add_u32 v%d, v%d, 3, v%d', sg, c, sg)
        k.e('v_lshlrev_b32 v%d, 1, v%d', sg, sg)
        k.e('s_mov_b32 s%d, %d', s_mb, ldb)
        k.e('v_mul_lo_u32 v%d, v%d, s%d', kk, kk, s_mb)
        k.e('v_add_u32 v%d, v%d, v%d', vBD + p, kk, sg)
    k.e('s_mul_i32 s%d, s%d, 3072', s_mb, s_w)
    k.e('s_add_u32 s%d, s%d, %d', s_mb, s_mb, B_OFF)

    def issue_dma(kc):
        slot = kc % NS
        k.e('s_mov_b32 s%d, %d', s_t0, kc * 64 * ldb)
        for p in range(3):
            k.e('s_add_u32 m0, s%d, %d', s_mb, slot * BST + p * 1024)
            k.nop(1)
            k.e('buffer_load_dwordx4 v%d, s[%d:%d], s%d offen lds', vBD + p, SB, SB + 3, s_t0)

    for kc in range(NS):
        issue_dma(kc)
    vGA, vGH, vW0, vW1 = 11, 12, 13, 14
    k.e('s_lshl_b32 s%d, s%d, 2', s_t0, s_w)
    k.e('v_add_u32 v4, s%d, v%d', s_t0, vG)
    k.e('s_lshl_b32 s%d, s%d, 6', s_t1, s_rb)
    k.e('v_add_u32 v5, s%d, v4', s_t1)
    k.e('v_lshlrev_b32 v5, 10, v5')
    k.e('v_lshl_add_u32 v%d, v%d, 4, v5', vGA, vI)
    k.e('v_subrev_u32 v%d, 0x4000, v%d', vGH, vGA)
    k.e('v_and_b32 v5, 15, v4')
    k.e('v_xor_b32 v5, v5, v%d', vI)
    k.e('v_lshlrev_b32 v5, 4, v5')
    k.e('v_lshl_add_u32 v%d, v4, 10, v5', vW0)
    k.e('v_add_u32 v%d, 0x10000, v%d', vW1, vW0)
    vAD = 32
    k.e('s_mov_b32 s%d, 0x8000', s_t1)
    for p in range(2):
        for q in range(4):
            k.e('buffer_load_dwordx4 %s, v%d, s[%d:%d], %s offen offset:%d', vr(vAD + p * 16 + q * 4, 4), vGA, SA, SA + 3,
                ('s%d' % s_t1) if p else '0', q * 256)
    lskip = k.newlabel()
    if attn:
        k.e('s_cmp_ge_u32 s%d, 4', s_w)
        k.e('s_cbranch_scc1 %s', lskip)
        for q in range(4):
            k.e('buffer_load_dwordx4 %s, v%d, s[%d:%d], 0 offen offset:%d', vr(vAD + 32 + q * 4, 4), vGH, SA, SA + 3, q * 256)
        k.label(lskip)
    vA = 16
    vH = 20
    vB = 24
    k.e('s_lshl_b32 s%d, s%d, 15', s_t0, s_wr)
    k.e('v_xor_b32 v4, v%d, v%d', vG, vI)
    k.e('v_and_b32 v4, 3, v4')
    k.e('v_and_b32 v5, 12, v%d', vI)
    for b in range(4):
        k.e('v_xor_b32 v6, %d, v5', b << 2)
        k.e('v_or_b32 v6, v6, v4')
        k.e('v_lshlrev_b32 v6, 4, v6')
        k.e('v_lshl_add_u32 v6, v%d, 10, v6', vI)
        k.e('v_add_u32 v%d, s%d, v6', vA + b, s_t0)
        if attn:
            k.e('v_add_u32 v%d, 0x10000, v6', vH + b)
    k.e('v_lshrrev_b32 v4, 2, v%d', vI)
    k.e('v_lshl_add_u32 v4, v%d, 3, v4', vG)
    k.e('v_mul_u32_u24 v4, 384, v4')
    k.e('v_and_b32 v5, 3, v%d', vI)
    k.e('v_lshl_add_u32 v4, v5, 3, v4')
    k.e('v_add_u32 v4, %d, v4', B_OFF)
    k.e('v_bfe_u32 v5, v%d, 3, 1', vI)
    k.e('v_and_b32 v6, 1, v%d', vG)
    k.e('v_lshl_add_u32 v5, v6, 1, v5')
    k.e('s_mul_i32 s%d, s%d, 3', s_t0, s_wc)
    for j in range(3):
        if attn and j > 0:
            if j == 1:
                k.e('s_add_u32 s%d, s%d, s%d', s_t1, s_t0, s_wr)
                k.e('s_add_u32 s%d, s%d, 1', s_t1, s_t1)
            else:
                k.e('s_sub_u32 s%d, s%d, s%d', s_t1, s_t0, s_wr)
                k.e('s_add_u32 s%d, s%d, 2', s_t1, s_t1)
        else:
            k.e('s_add_u32 s%d, s%d, %d', s_t1, s_t0, j)
        k.e('v_add_u32 v6, s%d, v5', s_t1)
        k.e('v_subrev_u32 v7, 12, v6')
        k.e('v_cmp_le_u32 vcc, 12, v6')
        k.nop(2)
        k.e('v_cndmask_b32 v6, v6, v7, vcc')
        k.e('v_lshl_add_u32 v%d, v6, 5, v4', vB + j)
    vF = 80
    vs, vq, vm, vrr, t0, t1 = 4, 6, 112, 114, 30, 15
    npass = 3 if attn else 2

    def ln_pass(p, wait):
        k.e('s_waitcnt vmcnt(%d)', wait)
        a = vAD + p * 16
        for i in range(16):
            k.e('v_lshlrev_b32 v%d, 16, v%d', vF + 2 * i, a + i)
            k.e('v_and_b32 v%d, 0xffff0000, v%d', vF + 2 * i + 1, a + i)
        k.e('v_pk_add_f32 %s, %s, %s', vr(vs, 2), vr(vF, 2), vr(vF + 2, 2))
        k.e('v_pk_mul_f32 %s, %s, %s', vr(vq, 2), vr(vF, 2), vr(vF, 2))
        k.e('v_pk_fma_f32 %s, %s, %s, %s', vr(vq, 2), vr(vF + 2, 2), vr(vF + 2, 2), vr(vq, 2))
        for i in range(2, 16):
            k.e('v_pk_add_f32 %s, %s, %s', vr(vs, 2), vr(vs, 2), vr(vF + 2 * i, 2))
            k.e('v_pk_fma_f32 %s, %s, %s, %s', vr(vq, 2), vr(vF + 2 * i, 2), vr(vF + 2 * i, 2), vr(vq, 2))
        k.e('v_add_f32 v%d, v%d, v%d', vs, vs, vs + 1)
        k.e('v_add_f32 v%d, v%d, v%d', vq, vq, vq + 1)
        for sh in (8, 4, 2, 1):
            k.nop(2)
            k.e('v_add_f32_dpp v%d, v%d, v%d row_ror:%d row_mask:0xf bank_mask:0xf', vs, vs, vs, sh)
            k.e('v_add_f32_dpp v%d, v%d, v%d row_ror:%d row_mask:0xf bank_mask:0xf', vq, vq, vq, sh)
        ln_stats(k, vs, vq, 1.0 / 512, vm, vrr, t0, t1)
        k.e('v_sub_f32 v%d, 0, v%d', vm, vm)
        k.e('v_mov_b32 v%d, v%d', vm + 1, vm)
        k.e('v_mov_b32 v%d, v%d', vrr + 1, vrr)
        for i in range(16):
            f = vF + 2 * i
            k.e('v_pk_add_f32 %s, %s, %s', vr(f, 2), vr(f, 2), vr(vm, 2))
            k.e('v_cvt_pk_bf16_f32 v%d, v%d, v%d', a + i, f, f + 1)
            k.e('v_lshlrev_b32 v%d, 16, v%d', f, a + i)
            k.e('v_and_b32 v%d, 0xffff0000, v%d', f + 1, a + i)
            k.e('v_pk_mul_f32 %s, %s, %s', vr(f, 2), vr(f, 2), vr(vrr, 2))
            k.e('v_cvt_pk_bf16_f32 v%d, v%d, v%d', a + i, f, f + 1)
        for q in range(4):
            if p < 2:
                k.e('ds_write_b128 v%d, %s offset:%d', vW0, vr(a + q * 4, 4), p * 32768 + q * 256)
            else:
                k.e('ds_write_b128 v%d, %s offset:%d', vW1, vr(a + q * 4, 4), q * 256)

    if attn:
        l47 = k.newlabel()
        ldone = k.newlabel()
        k.e('s_cmp_ge_u32 s%d, 4', s_w)
        k.e('s_cbranch_scc1 %s', l47)
        ln_pass(0, 8)
        ln_pass(1, 4)
        ln_pass(2, 0)
        k.e('s_branch %s', ldone)
        k.label(l47)
        ln_pass(0, 4)
        ln_pass(1, 0)
        k.label(ldone)
    else:
        ln_pass(0, 4)
        ln_pass(1, 0)
    k.e('s_waitcnt vmcnt(0) lgkmcnt(0)')
    k.e('s_barrier')
    FR = [112, 136]
    vACC = 160
    nacc = 7 if attn else 6
    for i in range(nacc * 4):
        k.e('v_mov_b32 v%d, 0', vACC + i)

    def read_frags(KS):
        fs = FR[KS & 1]
        kc, ks = KS >> 1, KS & 1
        slot = kc % NS
        a_, b_ = KS >> 2, KS & 3
        k.e('ds_read_b128 %s, v%d offset:%d', vr(fs, 4), vA + b_, a_ * 256)
        k.e('ds_read_b128 %s, v%d offset:%d', vr(fs + 4, 4), vA + b_, a_ * 256 + 16384)
        if attn:
            k.e('ds_read_b128 %s, v%d offset:%d', vr(fs + 8, 4), vH + b_, a_ * 256)
        for j in range(3):
            for hh in range(2):
                k.e('ds_read_b64_tr_b16 %s, v%d offset:%d', vr(fs + 12 + j * 4 + hh * 2, 2), vB + j,
                    slot * BST + (ks * 32 + hh * 4) * 384)

    def mfmas(KS):
        fs = FR[KS & 1]
        for j in range(3):
            for r in range(2):
                acc = vACC + (r * 3 + j) * 4
                k.e('v_mfma_f32_16x16x32_bf16 %s, %s, %s, %s', vr(acc, 4), vr(fs + 12 + j * 4, 4), vr(fs + r * 4, 4), vr(acc, 4))
            if attn and j == 1:
                acc = vACC + 24
                k.e('v_mfma_f32_16x16x32_bf16 %s, %s, %s, %s', vr(acc, 4), vr(fs + 16, 4), vr(fs + 8, 4), vr(acc, 4))

    read_frags(0)
    for KS in range(16):
        kc = KS >> 1
        if KS + 1 < 16:
            if (KS + 1) & 1 == 0:
                nxt = kc + 1
                last_issued = min(kc + NS - 1, 7)
                n = 3 * (last_issued - nxt)
                k.e('s_waitcnt vmcnt(%d) lgkmcnt(0)', n)
                k.e('s_barrier')
                if kc + NS <= 7:
                    issue_dma(kc + NS)
                read_frags(KS + 1)
                nrd = 9 if attn else 8
                mfmas(KS)
                continue
            read_frags(KS + 1)
            k.e('s_waitcnt lgkmcnt(%d)', 9 if attn else 8)
        else:
            k.e('s_waitcnt lgkmcnt(0)')
        mfmas(KS)
    k.nop(10)
    if attn:
        k.e('s_barrier')
        RS = 400
        vE0, vE1, vE2, vEH = 4, 5, 6, 7
        k.e('s_mul_i32 s%d, s%d, %d', s_t0, s_wr, 32 * RS)
        k.e('s_mul_i32 s%d, s%d, 96', s_t1, s_wc)
        k.e('v_mul_u32_u24 v%d, %d, v%d', vEH, RS, vI)
        k.e('v_lshl_add_u32 v%d, v%d, 3, v%d', vEH, vG, vEH)
        k.e('v_add_u32 v%d, s%d, v%d', vEH, s_t1, vEH)
        k.e('s_add_u32 s%d, s%d, %d', s_t0, s_t0, 16 * RS)
        k.e('v_add_u32 v%d, s%d, v%d', vE0, s_t0, vEH)
        k.e('s_lshl_b32 s%d, s%d, 5', s_t1, s_wr)
        k.e('v_add_u32 v%d, s%d, v%d', vE1, s_t1, vE0)
        k.e('v_add_u32 v%d, 32, v%d', vE1, vE1)
        k.e('v_subrev_u32 v%d, s%d, v%d', vE2, s_t1, vE0)
        k.e('v_add_u32 v%d, 64, v%d', vE2, vE2)
        k.e('v_add_u32 v%d, s%d, v%d', vEH, s_t1, vEH)
        k.e('v_add_u32 v%d, 32, v%d', vEH, vEH)
        vP = 32
        n = 0
        for r in range(2):
            for j in range(3):
                acc = vACC + (r * 3 + j) * 4
                pk = vP + 2 * n
                n += 1
                k.e('v_cvt_pk_bf16_f32 v%d, v%d, v%d', pk, acc, acc + 1)
                k.e('v_cvt_pk_bf16_f32 v%d, v%d, v%d', pk + 1, acc + 2, acc + 3)
                k.e('ds_write_b64 v%d, %s offset:%d', (vE0, vE1, vE2)[j], vr(pk, 2), r * 16 * RS)
        pk = vP + 2 * n
        k.e('v_cvt_pk_bf16_f32 v%d, v%d, v%d', pk, vACC + 24, vACC + 25)
        k.e('v_cvt_pk_bf16_f32 v%d, v%d, v%d', pk + 1, vACC + 26, vACC + 27)
        k.e('ds_write_b64 v%d, %s', vEH, vr(pk, 2))
        k.e('s_waitcnt lgkmcnt(0)')
        k.e('s_barrier')
        k.e('s_cmp_ge_u32 s%d, 4', s_w)
        k.e('s_cbranch_scc1 %s', k.endl)
        vb = 4
        k.e('s_mul_i32 s%d, s%d, 96', s_t0, s_w)
        k.e('v_mul_u32_u24 v%d, %d, v%d', vb, RS, vL)
        k.e('v_add_u32 v%d, s%d, v%d', vb, s_t0, vb)
        vQ, vKK, vVV = 32, 40, 104
        k.e('ds_read_b128 %s, v%d offset:%d', vr(vQ, 4), vb, 16 * RS)
        k.e('ds_read_b128 %s, v%d offset:%d', vr(vQ + 4, 4), vb, 16 * RS + 16)
        for w in range(8):
            k.e('ds_read_b128 %s, v%d offset:%d', vr(vKK + w * 8, 4), vb, (16 - 2 * w) * RS + 32)
            k.e('ds_read_b128 %s, v%d offset:%d', vr(vKK + w * 8 + 4, 4), vb, (16 - 2 * w) * RS + 48)
        for w in range(8):
            k.e('ds_read_b128 %s, v%d offset:%d', vr(vVV + w * 8, 4), vb, (16 - 2 * w) * RS + 64)
            k.e('ds_read_b128 %s, v%d offset:%d', vr(vVV + w * 8 + 4, 4), vb, (16 - 2 * w) * RS + 80)
        vLG = 8
        vS = 5
        k.e('s_lshl_b32 s%d, s%d, 6', s_t0, s_rb)
        k.e('v_add_u32 v%d, s%d, v%d', vS, s_t0, vL)
        k.e('v_mov_b32 v6, 0x%08x', f2u(-1e9))
        k.e('s_waitcnt lgkmcnt(15)')
        k.e('s_waitcnt lgkmcnt(0)')
        for w in range(8):
            k.e('v_mov_b32 v%d, 0', vLG + w)
        for w in range(8):
            for d in range(8):
                k.e('v_dot2_f32_bf16 v%d, v%d, v%d, v%d', vLG + w, vQ + d, vKK + w * 8 + d, vLG + w)
        k.nop(3)
        for w in range(8):
            round_bf16(k, vLG + w, vLG + w)
            k.e('v_mul_f32 v%d, 0.25, v%d', vLG + w, vLG + w)
            if w:
                k.e('v_cmp_le_u32 vcc, %d, v%d', 2 * w, vS)
                k.nop(2)
                k.e('v_cndmask_b32 v%d, v6, v%d, vcc', vLG + w, vLG + w)
        k.e('v_max3_f32 v7, v%d, v%d, v%d', vLG, vLG + 1, vLG + 2)
        k.e('v_max3_f32 v7, v7, v%d, v%d', vLG + 3, vLG + 4)
        k.e('v_max3_f32 v7, v7, v%d, v%d', vLG + 5, vLG + 6)
        k.e('v_max_f32 v7, v7, v%d', vLG + 7)
        for w in range(8):
            k.e('v_sub_f32 v%d, v%d, v7', vLG + w, vLG + w)
            k.e('v_mul_f32 v%d, 0x%08x, v%d', vLG + w, f2u(1.4426950408889634), vLG + w)
            k.e('v_exp_f32 v%d, v%d', vLG + w, vLG + w)
        k.nop(1)
        k.e('v_add_f32 v7, v%d, v%d', vLG, vLG + 1)
        for w in range(2, 8):
            k.e('v_add_f32 v7, v7, v%d', vLG + w)
        k.e('v_rcp_f32 v7, v7')
        k.nop(1)
        for w in range(8):
            k.e('v_mul_f32 v%d, v%d, v7', vLG + w, vLG + w)
        vPP = 16
        for w2 in range(4):
            k.e('v_cvt_pk_bf16_f32 v%d, v%d, v%d', vPP + w2, vLG + 2 * w2, vLG + 2 * w2 + 1)
        vO = 168
        vT = 20
        k.e('s_mov_b32 s%d, 0x05040100', s_t0)
        k.e('s_mov_b32 s%d, 0x07060302', s_t1)
        for i in range(16):
            k.e('v_mov_b32 v%d, 0', vO + i)
        for w2 in range(4):
            for d in range(8):
                va, vb_ = vVV + (2 * w2) * 8 + d, vVV + (2 * w2 + 1) * 8 + d
                t = vT + 2 * (d & 1)
                k.e('v_perm_b32 v%d, v%d, v%d, s%d', t, vb_, va, s_t0)
                k.e('v_perm_b32 v%d, v%d, v%d, s%d', t + 1, vb_, va, s_t1)
                k.e('v_dot2_f32_bf16 v%d, v%d, v%d, v%d', vO + 2 * d, t, vPP + w2, vO + 2 * d)
                k.e('v_dot2_f32_bf16 v%d, v%d, v%d, v%d', vO + 2 * d + 1, t + 1, vPP + w2, vO + 2 * d + 1)
        k.nop(3)
        vOP = 24
        for i in range(8):
            k.e('v_cvt_pk_bf16_f32 v%d, v%d, v%d', vOP + i, vO + 2 * i, vO + 2 * i + 1)
        k.e('s_lshl_b32 s%d, s%d, 2', s_t0, s_cg)
        k.e('s_add_u32 s%d, s%d, s%d', s_t0, s_t0, s_w)
        k.e('s_lshl_b32 s%d, s%d, 5', s_t0, s_t0)
        k.e('v_lshlrev_b32 v%d, 10, v%d', vS, vS)
        k.e('v_add_u32 v%d, s%d, v%d', vS, s_t0, vS)
        k.e('buffer_store_dwordx4 %s, v%d, s[%d:%d], 0 offen', vr(vOP, 4), vS, SO, SO + 3)
        k.e('buffer_store_dwordx4 %s, v%d, s[%d:%d], 0 offen offset:16', vr(vOP + 4, 4), vS, SO, SO + 3)
    else:
        k.e('s_mov_b32 s%d, 0x%08x', SG_C1, f2u(GELU_C1))
        k.e('v_mov_b32 v%d, 0x%08x', V_C0, f2u(GELU_C0))
        vE = 4
        k.e('s_lshl_b32 s%d, s%d, 6', s_t0, s_rb)
        k.e('s_lshl_b32 s%d, s%d, 5', s_t1, s_wr)
        k.e('s_add_u32 s%d, s%d, s%d', s_t0, s_t0, s_t1)
        k.e('v_add_u32 v%d, s%d, v%d', vE, s_t0, vI)
        k.e('s_mov_b32 s%d, 2752', s_t1)
        k.e('v_mul_lo_u32 v%d, v%d, s%d', vE, vE, s_t1)
        k.e('s_mul_i32 s%d, s%d, 3', s_t0, s_wc)
        k.e('s_add_u32 s%d, s%d, s%d', s_t0, s_t0, s_start)
        k.e('s_lshl_b32 s%d, s%d, 5', s_t0, s_t0)
        k.e('v_lshl_add_u32 v%d, v%d, 3, v%d', vE, vG, vE)
        k.e('v_add_u32 v%d, s%d, v%d', vE, s_t0, vE)
        k.e('s_mov_b32 s%d, %d', s_t1, 16 * 2752)
        for r in range(2):
            for j in range(3):
                acc = vACC + (r * 3 + j) * 4
                pk = 32 + (r * 3 + j) * 2
                for i in range(4):
                    round_bf16(k, acc + i, acc + i)
                for i in range(4):
                    gelu_inplace(k, acc + i, 8 + i, None)
                k.e('v_cvt_pk_bf16_f32 v%d, v%d, v%d', pk, acc, acc + 1)
                k.e('v_cvt_pk_bf16_f32 v%d, v%d, v%d', pk + 1, acc + 2, acc + 3)
                k.e('buffer_store_dwordx2 %s, v%d, s[%d:%d], %s offen offset:%d', vr(pk, 2), vE, SO, SO + 3,
                    ('s%d' % s_t1) if r else '0', j * 32)
    return k, lds, 192


def gen_dmagemm(name, mode, asrc, lda, bsrc, ldb, Kdim, osrc, ldo, rsrc, ldr, bias=None):
    k = K(name)
    BN = 64 if mode == 'res' else 96
    NTW = BN // 32
    BROW = BN * 2
    BST_B = 64 * BROW
    ST = 8192 + BST_B
    NSTG = (Kdim + 63) // 64
    NS = min(NSTG, 163840 // ST)
    lds = NS * ST
    PB = BST_B // 1024 // 4
    NDMA = 2 + PB
    SA, SB, SO, SR, SBI = 4, 8, 12, 16, 20
    s_rb, s_cg, s_w, s_wr, s_wc, s_ma, s_mb, s_t0, s_t1, s_start, s_t2 = 24, 25, 26, 27, 28, 29, 30, 31, 32, 33, 34
    srds = [(SA, asrc), (SB, bsrc), (SO, osrc), (SR, rsrc)]
    if bias:
        srds.append((SBI, bias))
    k.prologue(256, srds)
    decode_wg(k, s_rb, s_cg)
    vL, vI, vG = 1, 2, 3
    k.e('v_and_b32 v%d, 63, v0', vL)
    k.e('v_lshrrev_b32 v4, 6, v0')
    k.e('v_and_b32 v%d, 15, v0', vI)
    k.e('v_readfirstlane_b32 s%d, v4', s_w)
    k.e('v_bfe_u32 v%d, v0, 4, 2', vG)
    k.e('s_and_b32 s%d, s%d, 1', s_wr, s_w)
    k.e('s_lshr_b32 s%d, s%d, 1', s_wc, s_w)
    if mode == 'gate':
        k.e('s_mul_i32 s%d, s%d, %d', s_start, s_cg, 37 * 9363)
        k.e('s_lshr_b32 s%d, s%d, 16', s_start, s_start)
    else:
        k.e('s_lshl_b32 s%d, s%d, 2', s_start, s_cg)
    vAD, vBD = 8, 10
    k.e('v_lshrrev_b32 v4, 3, v%d', vL)
    k.e('v_and_b32 v5, 7, v%d', vL)
    k.e('s_lshl_b32 s%d, s%d, 4', s_t0, s_w)
    k.e('s_mov_b32 s%d, %d', s_t1, lda)
    for p in range(2):
        k.e('v_add_u32 v6, s%d, v4', s_t0)
        if p:
            k.e('v_add_u32 v6, 8, v6')
        k.e('v_bfe_u32 v7, v6, 1, 3')
        k.e('v_xor_b32 v7, v7, v5')
        k.e('s_lshl_b32 s%d, s%d, 6', s_t2, s_rb)
        k.e('v_add_u32 v6, s%d, v6', s_t2)
        k.e('v_mul_lo_u32 v6, v6, s%d', s_t1)
        k.e('v_lshl_add_u32 v%d, v7, 4, v6', vAD + p)
    k.e('s_mov_b32 s%d, %d', s_t1, ldb)
    if BN == 64:
        for p in range(2):
            k.e('v_add_u32 v6, s%d, v4', s_t0)
            if p:
                k.e('v_add_u32 v6, 8, v6')
            k.e('v_bfe_u32 v7, v6, 1, 1')
            k.e('v_bfe_u32 v13, v6, 3, 1')
            k.e('v_lshl_add_u32 v7, v13, 1, v7')
            k.e('v_lshrrev_b32 v13, 1, v5')
            k.e('v_xor_b32 v7, v7, v13')
            k.e('v_add_u32 v7, s%d, v7', s_start)
            k.e('v_lshlrev_b32 v7, 4, v7')
            k.e('v_and_b32 v13, 1, v5')
            k.e('v_lshl_add_u32 v7, v13, 3, v7')
            k.e('v_lshlrev_b32 v7, 1, v7')
            k.e('v_mul_lo_u32 v6, v6, s%d', s_t1)
            k.e('v_add_u32 v%d, v6, v7', vBD + p)
    else:
        k.e('s_mul_i32 s%d, s%d, 192', s_t0, s_w)
        k.e('s_mov_b32 s%d, 43691', s_t2)
        for p in range(3):
            k.e('v_add_u32 v6, s%d, v%d', s_t0, vL)
            if p:
                k.e('v_add_u32 v6, %d, v6', 64 * p)
            k.e('v_mul_lo_u32 v7, v6, s%d', s_t2)
            k.e('v_lshrrev_b32 v7, 19, v7')
            k.e('v_mul_u32_u24 v13, 12, v7')
            k.e('v_sub_u32 v6, v6, v13')
            k.e('v_bfe_u32 v13, v7, 3, 1')
            k.e('v_lshrrev_b32 v14, 1, v6')
            k.e('v_add_u32 v14, 6, v14')
            k.e('v_sub_u32 v14, v14, v13')
            k.e('v_subrev_u32 v13, 6, v14')
            k.e('v_cmp_le_u32 vcc, 6, v14')
            k.nop(2)
            k.e('v_cndmask_b32 v14, v14, v13, vcc')
            k.e('v_add_u32 v14, s%d, v14', s_start)
            k.e('v_lshlrev_b32 v14, 4, v14')
            k.e('v_and_b32 v6, 1, v6')
            k.e('v_lshl_add_u32 v14, v6, 3, v14')
            k.e('v_lshlrev_b32 v14, 1, v14')
            k.e('v_mul_lo_u32 v7, v7, s%d', s_t1)
            k.e('v_add_u32 v%d, v7, v14', vBD + p)
    k.e('s_lshl_b32 s%d, s%d, 11', s_ma, s_w)
    k.e('s_mul_i32 s%d, s%d, %d', s_mb, s_w, PB * 1024)
    k.e('s_add_u32 s%d, s%d, 8192', s_mb, s_mb)

    def issue_dma(kc):
        slot = kc % NS
        k.e('s_mov_b32 s%d, %d', s_t0, kc * 128)
        k.e('s_mov_b32 s%d, %d', s_t1, kc * 64 * ldb)
        for p in range(2):
            k.e('s_add_u32 m0, s%d, %d', s_ma, slot * ST + p * 1024)
            k.nop(1)
            k.e('buffer_load_dwordx4 v%d, s[%d:%d], s%d offen lds', vAD + p, SA, SA + 3, s_t0)
        for p in range(PB):
            k.e('s_add_u32 m0, s%d, %d', s_mb, slot * ST + p * 1024)
            k.nop(1)
            k.e('buffer_load_dwordx4 v%d, s[%d:%d], s%d offen lds', vBD + p, SB, SB + 3, s_t1)

    for kc in range(NS):
        issue_dma(kc)
    vE = 16
    vER = 17
    vRES = 32
    vBI = 48
    k.e('s_lshl_b32 s%d, s%d, 6', s_t0, s_rb)
    k.e('s_lshl_b32 s%d, s%d, 5', s_t1, s_wr)
    k.e('s_add_u32 s%d, s%d, s%d', s_t0, s_t0, s_t1)
    k.e('v_add_u32 v4, s%d, v%d', s_t0, vI)
    k.e('s_mul_i32 s%d, s%d, %d', s_t2, s_wc, NTW)
    k.e('s_add_u32 s%d, s%d, s%d', s_t2, s_t2, s_start)
    k.e('s_lshl_b32 s%d, s%d, 5', s_t2, s_t2)
    k.e('s_mov_b32 s%d, %d', s_t1, ldo)
    k.e('v_mul_lo_u32 v%d, v4, s%d', vE, s_t1)
    k.e('v_lshl_add_u32 v%d, v%d, 3, v%d', vE, vG, vE)
    k.e('v_add_u32 v%d, s%d, v%d', vE, s_t2, vE)
    k.e('s_mov_b32 s%d, %d', s_t1, ldr)
    k.e('v_mul_lo_u32 v%d, v4, s%d', vER, s_t1)
    k.e('v_lshl_add_u32 v%d, v%d, 3, v%d', vER, vG, vER)
    k.e('v_add_u32 v%d, s%d, v%d', vER, s_t2, vER)
    s_ro, s_oo = 35, 36
    k.e('s_mov_b32 s%d, %d', s_ro, 16 * ldr)
    k.e('s_mov_b32 s%d, %d', s_oo, 16 * ldo)
    nepi = 0
    for r in range(2):
        for j in range(NTW):
            k.e('buffer_load_dwordx2 %s, v%d, s[%d:%d], %s offen offset:%d', vr(vRES + (r * NTW + j) * 2, 2), vER, SR, SR + 3,
                ('s%d' % s_ro) if r else '0', j * 32)
            nepi += 1
    if bias:
        k.e('v_lshlrev_b32 v5, 1, v4')
        k.e('buffer_load_ushort v%d, v5, s[%d:%d], 0 offen', vBI, SBI, SBI + 3)
        k.e('buffer_load_ushort v%d, v5, s[%d:%d], 0 offen offset:32', vBI + 1, SBI, SBI + 3)
        nepi += 2
    vA = 20
    vB = 22
    vAc, vBc = 26, 28
    k.e('s_lshl_b32 s%d, s%d, 12', s_t0, s_wr)
    k.e('v_lshrrev_b32 v4, 1, v%d', vI)
    k.e('v_xor_b32 v5, v%d, v4', vG)
    k.e('v_and_b32 v5, 3, v5')
    k.e('v_and_b32 v4, 4, v4')
    for ks in range(2):
        k.e('v_xor_b32 v6, %d, v4', ks << 2)
        k.e('v_or_b32 v6, v6, v5')
        k.e('v_lshlrev_b32 v6, 4, v6')
        k.e('v_lshl_add_u32 v6, v%d, 7, v6', vI)
        k.e('v_add_u32 v%d, s%d, v6', vA + ks, s_t0)
    k.e('v_lshrrev_b32 v4, 2, v%d', vI)
    k.e('v_lshl_add_u32 v4, v%d, 3, v4', vG)
    k.e('v_mul_u32_u24 v4, %d, v4', BROW)
    k.e('v_and_b32 v5, 3, v%d', vI)
    k.e('v_lshl_add_u32 v4, v5, 3, v4')
    k.e('v_add_u32 v4, 0x2000, v4')
    k.e('v_and_b32 v6, 1, v%d', vG)
    k.e('s_mul_i32 s%d, s%d, %d', s_t0, s_wc, NTW)
    if BN == 64:
        k.e('v_bfe_u32 v5, v%d, 3, 1', vI)
        k.e('v_lshl_add_u32 v5, v6, 1, v5')
        for j in range(NTW):
            k.e('s_add_u32 s%d, s%d, %d', s_t1, s_t0, j)
            k.e('v_xor_b32 v7, s%d, v5', s_t1)
            k.e('v_lshl_add_u32 v%d, v7, 5, v4', vB + j)
    else:
        for j in range(NTW):
            k.e('s_add_u32 s%d, s%d, %d', s_t1, s_t0, j)
            k.e('v_add_u32 v7, s%d, v6', s_t1)
            k.e('v_subrev_u32 v13, 6, v7')
            k.e('v_cmp_le_u32 vcc, 6, v7')
            k.nop(2)
            k.e('v_cndmask_b32 v7, v7, v13, vcc')
            k.e('v_lshl_add_u32 v%d, v7, 5, v4', vB + j)
    FSZ = 16 + NTW * 8
    FR = [64, 64 + FSZ]
    vACC = 64 + 2 * FSZ
    for i in range(2 * NTW * 4):
        k.e('v_mov_b32 v%d, 0', vACC + i)

    def read_frags(kc):
        fs = FR[kc & 1]
        sb = (kc % NS) * ST
        if sb:
            for ks in range(2):
                k.e('v_add_u32 v%d, 0x%x, v%d', vAc + ks, sb, vA + ks)
            for j in range(NTW):
                k.e('v_add_u32 v%d, 0x%x, v%d', vBc + j, sb, vB + j)
            a_, b_ = vAc, vBc
        else:
            a_, b_ = vA, vB
        for ks in range(2):
            for r in range(2):
                k.e('ds_read_b128 %s, v%d offset:%d', vr(fs + (ks * 2 + r) * 4, 4), a_ + ks, r * 2048)
            for j in range(NTW):
                for hh in range(2):
                    k.e('ds_read_b64_tr_b16 %s, v%d offset:%d', vr(fs + 16 + (ks * NTW + j) * 4 + hh * 2, 2), b_ + j,
                        (ks * 32 + hh * 4) * BROW)

    def mfmas(kc):
        fs = FR[kc & 1]
        for ks in range(2):
            for j in range(NTW):
                for r in range(2):
                    acc = vACC + (r * NTW + j) * 4
                    k.e('v_mfma_f32_16x16x32_bf16 %s, %s, %s, %s', vr(acc, 4), vr(fs + 16 + (ks * NTW + j) * 4, 4),
                        vr(fs + (ks * 2 + r) * 4, 4), vr(acc, 4))

    issued = [('dma', kc) for kc in range(NS)] + [('epi', 0)]
    cnt = lambda g: NDMA if g[0] == 'dma' else nepi

    def wait_stage(kc):
        idx = issued.index(('dma', kc))
        n = sum(cnt(g) for g in issued[idx + 1:])
        return n

    k.e('s_waitcnt vmcnt(%d)', wait_stage(0))
    k.e('s_barrier')
    read_frags(0)
    for kc in range(NSTG):
        if kc + 1 < NSTG:
            k.e('s_waitcnt vmcnt(%d) lgkmcnt(0)', wait_stage(kc + 1))
            k.e('s_barrier')
            if kc + NS < NSTG:
                issue_dma(kc + NS)
                issued.append(('dma', kc + NS))
            read_frags(kc + 1)
        else:
            k.e('s_waitcnt vmcnt(0) lgkmcnt(0)')
        mfmas(kc)
    k.nop(10)
    for r in range(2):
        if bias:
            k.e('v_lshlrev_b32 v%d, 16, v%d', vBI + r, vBI + r)
        for j in range(NTW):
            acc = vACC + (r * NTW + j) * 4
            rs = vRES + (r * NTW + j) * 2
            for i in range(4):
                round_bf16(k, acc + i, acc + i)
            k.e('v_lshlrev_b32 v4, 16, v%d', rs)
            k.e('v_and_b32 v5, 0xffff0000, v%d', rs)
            k.e('v_lshlrev_b32 v6, 16, v%d', rs + 1)
            k.e('v_and_b32 v7, 0xffff0000, v%d', rs + 1)
            if mode == 'res':
                for i in range(4):
                    k.e('v_add_f32 v%d, v%d, v%d', acc + i, acc + i, 4 + i)
            else:
                for i in range(4):
                    k.e('v_add_f32 v%d, v%d, v%d', acc + i, acc + i, vBI + r)
                for i in range(4):
                    round_bf16(k, acc + i, acc + i)
                for i in range(4):
                    k.e('v_mul_f32 v%d, v%d, v%d', acc + i, acc + i, 4 + i)
            k.e('v_cvt_pk_bf16_f32 v%d, v%d, v%d', rs, acc, acc + 1)
            k.e('v_cvt_pk_bf16_f32 v%d, v%d, v%d', rs + 1, acc + 2, acc + 3)
            k.e('buffer_store_dwordx2 %s, v%d, s[%d:%d], %s offen offset:%d', vr(rs, 2), vE, SO, SO + 3,
                ('s%d' % s_oo) if r else '0', j * 32)
    return k, lds, vACC + 2 * NTW * 4


def gen_ln2(name):
    k = K(name)
    SA, SO = 4, 8
    k.prologue(512, [(SA, ('ws', Z_OFF, ZB)), (SO, ('ws', Z2N_OFF, Z2B))])
    k.e('v_and_b32 v1, 63, v0')
    k.e('v_lshrrev_b32 v2, 6, v0')
    k.e('s_lshl_b32 s16, s2, 2')
    k.e('v_add_u32 v2, s16, v2')
    k.e('s_mov_b32 s17, 2752')
    k.e('v_mul_lo_u32 v3, v2, s17')
    k.e('v_lshl_add_u32 v3, v1, 5, v3')
    k.e('v_add_u32 v3, 1376, v3')
    k.e('s_mov_b32 s17, 1376')
    k.e('v_mul_lo_u32 v4, v2, s17')
    k.e('v_lshl_add_u32 v4, v1, 5, v4')
    k.e('v_mov_b32 v5, 0x7ffff000')
    k.e('v_cmp_gt_u32 vcc, 43, v1')
    k.nop(2)
    k.e('v_cndmask_b32 v3, v5, v3, vcc')
    k.e('v_cndmask_b32 v4, v5, v4, vcc')
    k.e('buffer_load_dwordx4 v[8:11], v3, s[4:7], 0 offen')
    k.e('buffer_load_dwordx4 v[12:15], v3, s[4:7], 0 offen offset:16')
    vF = 16
    k.e('s_waitcnt vmcnt(0)')
    for i in range(8):
        k.e('v_lshlrev_b32 v%d, 16, v%d', vF + 2 * i, 8 + i)
        k.e('v_and_b32 v%d, 0xffff0000, v%d', vF + 2 * i + 1, 8 + i)
    vs, vq = 32, 34
    k.e('v_pk_add_f32 v[32:33], v[16:17], v[18:19]')
    k.e('v_pk_mul_f32 v[34:35], v[16:17], v[16:17]')
    k.e('v_pk_fma_f32 v[34:35], v[18:19], v[18:19], v[34:35]')
    for i in range(2, 8):
        k.e('v_pk_add_f32 v[32:33], v[32:33], %s', vr(vF + 2 * i, 2))
        k.e('v_pk_fma_f32 v[34:35], %s, %s, v[34:35]', vr(vF + 2 * i, 2), vr(vF + 2 * i, 2))
    k.e('v_add_f32 v32, v32, v33')
    k.e('v_add_f32 v34, v34, v35')
    for sh in (8, 4, 2, 1):
        k.nop(2)
        k.e('v_add_f32_dpp v32, v32, v32 row_ror:%d row_mask:0xf bank_mask:0xf', sh)
        k.e('v_add_f32_dpp v34, v34, v34 row_ror:%d row_mask:0xf bank_mask:0xf', sh)
    k.nop(2)
    for i, ln in enumerate((0, 16, 32)):
        k.e('v_readlane_b32 s%d, v32, %d', 20 + i, ln)
        k.e('v_readlane_b32 s%d, v34, %d', 24 + i, ln)
    k.nop(2)
    k.e('v_mov_b32 v32, s20')
    k.e('v_mov_b32 v34, s24')
    k.e('v_add_f32 v32, s21, v32')
    k.e('v_add_f32 v34, s25, v34')
    k.e('v_add_f32 v32, s22, v32')
    k.e('v_add_f32 v34, s26, v34')
    ln_stats(k, 32, 34, 1.0 / 688, 36, 38, 40, 41)
    k.e('v_sub_f32 v36, 0, v36')
    k.e('v_mov_b32 v37, v36')
    k.e('v_mov_b32 v39, v38')
    for i in range(8):
        f = vF + 2 * i
        k.e('v_pk_add_f32 %s, %s, v[36:37]', vr(f, 2), vr(f, 2))
        k.e('v_cvt_pk_bf16_f32 v%d, v%d, v%d', 8 + i, f, f + 1)
        k.e('v_lshlrev_b32 v%d, 16, v%d', f, 8 + i)
        k.e('v_and_b32 v%d, 0xffff0000, v%d', f + 1, 8 + i)
        k.e('v_pk_mul_f32 %s, %s, v[38:39]', vr(f, 2), vr(f, 2))
        k.e('v_cvt_pk_bf16_f32 v%d, v%d, v%d', 8 + i, f, f + 1)
    k.e('buffer_store_dwordx4 v[8:11], v4, s[8:11], 0 offen')
    k.e('buffer_store_dwordx4 v[12:15], v4, s[8:11], 0 offen offset:16')
    return k, 0, 48


def build():
    ws = lambda off, n: ('ws', off, n)
    kern = {}
    kern['k1a_kernel'] = gen_lngemm('k1a_kernel', True, ('A_x', 0, XB), ('wqkv', 0, 512 * 1536 * 2), 3072, ws(O_OFF, XB))
    kern['k1b_kernel'] = gen_lngemm('k1b_kernel', True, ws(X2_OFF, XB), ('wqkv', 0, 512 * 1536 * 2), 3072, ws(O_OFF, XB))
    kern['k2a_kernel'] = gen_dmagemm('k2a_kernel', 'res', ws(O_OFF, XB), 1024, ('wo', 0, 512 * 512 * 2), 1024, 512,
                                     ws(X1_OFF, XB), 1024, ('A_x', 0, XB), 1024)
    kern['k2b_kernel'] = gen_dmagemm('k2b_kernel', 'res', ws(O_OFF, XB), 1024, ('wo', 0, 512 * 512 * 2), 1024, 512,
                                     ws(X1_OFF, XB), 1024, ws(X2_OFF, XB), 1024)
    kern['k3_kernel'] = gen_lngemm('k3_kernel', False, ws(X1_OFF, XB), ('w_in', 0, 512 * 1376 * 2), 2752, ws(Z_OFF, ZB))
    kern['k3b_kernel'] = gen_ln2('k3b_kernel')
    kern['k4_kernel'] = gen_dmagemm('k4_kernel', 'gate', ('w_sp', 0, S * S * 2), 4096, ws(Z2N_OFF, Z2B), 1376, 2048,
                                    ws(H_OFF, Z2B), 1376, ws(Z_OFF, ZB), 2752, bias=('b_sp', 0, S * 2))
    kern['k5a_kernel'] = gen_dmagemm('k5a_kernel', 'res', ws(H_OFF, Z2B), 1376, ('w_out', 0, 688 * 512 * 2), 1024, 688,
                                     ws(X2_OFF, XB), 1024, ws(X1_OFF, XB), 1024)
    kern['k5b_kernel'] = gen_dmagemm('k5b_kernel', 'res', ws(H_OFF, Z2B), 1376, ('w_out', 0, 688 * 512 * 2), 1024, 688,
                                     ('out', 0, XB), 1024, ws(X1_OFF, XB), 1024)
    order = ['k1a_kernel', 'k2a_kernel', 'k3_kernel', 'k3b_kernel', 'k4_kernel', 'k5a_kernel',
             'k1b_kernel', 'k2b_kernel', 'k3_kernel', 'k3b_kernel', 'k4_kernel', 'k5b_kernel']
    hdr = open('interleave_layers__sliding_local_dilated__mixer_gmlp__prompt.s.ref').read().split('\n')
    hdr = [l for l in hdr if l.startswith(';') and '@launch' not in l and 'Override launch' not in l and 'grid=ceil' not in l]
    out = hdr[:]
    for n in order:
        kk, lds, nv = kern[n]
        grid = 512 if n == 'k3b_kernel' else 256
        blk = 512 if n.startswith('k1') or n == 'k3_kernel' else 256
        out.append('; @launch kernel=%s grid=(%d,1,1) block=(%d,1,1) lds=%d' % (n, grid, blk, lds))
    out.append('.amdgcn_target "amdgcn-amd-amdhsa--gfx950"')
    out.append('.text')
    kds = []
    for n, (kk, lds, nv) in kern.items():
        t, kd = kk.text(nv)
        out.append(t)
        kds.append(kd)
    out.append('.section .rodata,"a"')
    out += kds
    return '\n'.join(out)


if __name__ == '__main__':
    dst = sys.argv[1] if len(sys.argv) > 1 else 'interleave_layers__sliding_local_dilated__mixer_gmlp__prompt.s'
    open(dst, 'w').write(build())
    for cg in range(8):
        assert (cg * 74 * 9363) >> 16 == cg * 74 // 7 and (cg * 37 * 9363) >> 16 == cg * 37 // 7
    for sg in range(1536):
        assert (sg * 43691) >> 20 == sg // 24 and (sg * 43691) >> 19 == sg // 12
    for t in range(12):
        assert (t * 11) >> 5 == t // 3
```

```python
import sys, os, struct
STAMPS = bool(os.environ.get('STAMPS'))
S, D = 2048, 512
F, FH = 1376, 688
MB = 1 << 20
O_OFF, X1_OFF, X2_OFF, Z_OFF, Z2N_OFF, H_OFF = 0, 2 * MB, 4 * MB, 6 * MB, 12 * MB, 16 * MB
XB = S * D * 2
ZB = S * F * 2
Z2T = 8 * S * 192
LDH = 1408
HB = S * LDH
KA = dict(A_x=0, wqkv=8, wo=16, B_x=24, w_in=32, w_sp=40, b_sp=48, w_out=56, out=64, dbg=72, ws=80)


def f2u(f):
    return struct.unpack('<I', struct.pack('<f', f))[0]


def vr(a, n):
    return 'v[%d:%d]' % (a, a + n - 1)


class K:
    def __init__(self, name):
        self.name = name
        self.L = []
        self.lbl = 0
        self.nst = 0
        self.endl = '.Lend_' + name

    def e(self, s, *a):
        self.L.append('  ' + (s % a if a else s))

    def label(self, n):
        self.L.append(n + ':')

    def newlabel(self, p='L'):
        self.lbl += 1
        return '.%s_%s_%d' % (p, self.name, self.lbl)

    def nop(self, n):
        while n > 0:
            m = min(n, 16)
            self.e('s_nop %d', m - 1)
            n -= m

    def stamp(self):
        if not STAMPS:
            return
        i = self.nst
        self.nst += 1
        self.e('s_memtime s[98:99]')
        self.e('s_waitcnt lgkmcnt(0)')
        self.e('s_mov_b32 s%d, s98', 60 + i)

    def dump_stamps(self, s_w):
        if not STAMPS:
            return
        l = self.newlabel()
        l2 = self.newlabel()
        self.e('s_cmp_lg_u32 s%d, 0', s_w)
        self.e('s_cbranch_scc1 %s', l)
        self.e('s_cmp_eq_u32 s2, 0')
        self.e('s_cselect_b32 s97, 0, 128')
        self.e('s_cbranch_scc1 %s', l2)
        self.e('s_cmp_lg_u32 s2, 129')
        self.e('s_cbranch_scc1 %s', l)
        self.label(l2)
        self.e('s_load_dwordx2 s[92:93], s[0:1], 72')
        self.e('s_waitcnt lgkmcnt(0)')
        self.e('s_mov_b32 s94, 256')
        self.e('s_mov_b32 s95, 0x00020000')
        self.e('v_mov_b32 v1, s97')
        for i in range(self.nst):
            self.e('v_mov_b32 v2, s%d', 60 + i)
            self.e('buffer_store_dword v2, v1, s[92:95], 0 offen offset:%d', 4 * i)
            self.nop(2)
        self.label(l)

    def karg_issue(self, srds):
        for sreg, src in srds:
            self.e('s_load_dwordx2 s[%d:%d], s[0:1], %d', sreg, sreg + 1, KA[src[0]])

    def karg_finish(self, srds):
        self.e('s_waitcnt lgkmcnt(0)')
        for sreg, (name, off, nbytes) in srds:
            if off:
                self.e('s_add_u32 s%d, s%d, 0x%x', sreg, sreg, off)
                self.e('s_addc_u32 s%d, s%d, 0', sreg + 1, sreg + 1)
            self.e('s_mov_b32 s%d, 0x%x', sreg + 2, nbytes)
            self.e('s_mov_b32 s%d, 0x00020000', sreg + 3)

    def text(self, nvgpr, nsgpr=100):
        out = ['.globl %s' % self.name, '.p2align 8', '.type %s,@function' % self.name, self.name + ':']
        out += self.L
        out += [self.endl + ':', '  s_endpgm']
        acc = (nvgpr + 3) // 4 * 4
        kd = ['.p2align 6', '.amdhsa_kernel %s' % self.name,
              '  .amdhsa_next_free_vgpr %d' % nvgpr, '  .amdhsa_next_free_sgpr %d' % nsgpr,
              '  .amdhsa_accum_offset %d' % acc, '  .amdhsa_group_segment_fixed_size 0',
              '  .amdhsa_kernarg_size 88', '  .amdhsa_user_sgpr_count 2',
              '  .amdhsa_user_sgpr_kernarg_segment_ptr 1', '  .amdhsa_system_sgpr_workgroup_id_x 1',
              '.end_amdhsa_kernel']
        return '\n'.join(out) + '\n', '\n'.join(kd) + '\n'


def round_bf16(k, dst, src):
    k.e('v_cvt_pk_bf16_f32 v%d, v%d, v%d', dst, src, src)
    k.e('v_lshlrev_b32 v%d, 16, v%d', dst, dst)


def ln_stats(k, vs, vq, inv_n, vm, vr_, t0, t1):
    k.e('v_mul_f32 v%d, 0x%08x, v%d', vs, f2u(inv_n), vs)
    k.e('v_mul_f32 v%d, 0x%08x, v%d', vq, f2u(inv_n), vq)
    k.e('v_fma_f32 v%d, -v%d, v%d, v%d', vq, vs, vs, vq)
    k.e('v_max_f32 v%d, 0, v%d', vq, vq)
    round_bf16(k, vm, vs)
    round_bf16(k, t0, vq)
    k.e('v_add_f32 v%d, 0x%08x, v%d', t0, f2u(1e-5), t0)
    round_bf16(k, t0, t0)
    k.e('v_sqrt_f32 v%d, v%d', t1, t0)
    k.nop(1)
    round_bf16(k, t1, t1)
    k.e('v_rcp_f32 v%d, v%d', vr_, t1)
    k.nop(1)


def decode_wg(k, s_rb, s_cg):
    k.e('s_and_b32 s%d, s2, 7', s_rb)
    k.e('s_lshl_b32 s%d, s%d, 2', s_rb, s_rb)
    k.e('s_lshr_b32 s%d, s2, 3', s_cg)
    k.e('s_and_b32 s%d, s%d, 3', s_cg, s_cg)
    k.e('s_add_u32 s%d, s%d, s%d', s_rb, s_rb, s_cg)
    k.e('s_lshr_b32 s%d, s2, 5', s_cg)


SG_C1 = 40
V_C0 = 31
GELU_C0 = -2.0 * 0.7978845608028654 * 1.4426950408889634
GELU_C1 = GELU_C0 * 0.044715


def gelu4(k, x, t):
    for i in range(4):
        k.e('v_mul_f32 v%d, v%d, v%d', t + i, x + i, x + i)
    for i in range(4):
        k.e('v_fma_f32 v%d, v%d, s%d, v%d', t + i, t + i, SG_C1, V_C0)
    for i in range(4):
        k.e('v_mul_f32 v%d, v%d, v%d', t + i, t + i, x + i)
    for i in range(4):
        k.e('v_exp_f32 v%d, v%d', t + i, t + i)
    for i in range(4):
        k.e('v_add_f32 v%d, 1.0, v%d', t + i, t + i)
    for i in range(4):
        k.e('v_rcp_f32 v%d, v%d', t + i, t + i)
    for i in range(4):
        k.e('v_mul_f32 v%d, v%d, v%d', x + i, x + i, t + i)


def gen_lngemm(name, attn, xsrc, wsrc, ldb, osrc):
    k = K(name)
    A_ROWS = 80 if attn else 64
    B_OFF = A_ROWS * 1024
    BST = 24576
    NS = 3
    lds = B_OFF + NS * BST
    SA, SB, SO = 4, 8, 12
    s_rb, s_cg, s_w, s_wr, s_wc, s_mb, s_t0, s_t1, s_start = 16, 17, 18, 19, 20, 21, 22, 23, 24
    k.e('s_cmp_ge_u32 s2, 256')
    k.e('s_cbranch_scc1 %s', k.endl)
    srds_c = [(SA, xsrc), (SO, osrc)]
    srds_l = [(SB, wsrc)]
    k.karg_issue(srds_c + srds_l)
    k.stamp()
    decode_wg(k, s_rb, s_cg)
    vL, vI, vG = 1, 2, 3
    k.e('v_and_b32 v%d, 63, v0', vL)
    k.e('v_lshrrev_b32 v4, 6, v0')
    k.e('v_and_b32 v%d, 15, v0', vI)
    k.e('v_readfirstlane_b32 s%d, v4', s_w)
    k.e('v_bfe_u32 v%d, v0, 4, 2', vG)
    if not attn:
        k.e('s_mul_i32 s%d, s%d, %d', s_start, s_cg, 37 * 9363)
        k.e('s_lshr_b32 s%d, s%d, 16', s_start, s_start)
        k.e('s_lshl_b32 s%d, s%d, 1', s_start, s_start)
    lload = k.newlabel('Lloader')
    k.e('s_cmp_ge_u32 s%d, 8', s_w)
    k.e('s_cbranch_scc1 %s', lload)
    k.e('s_and_b32 s%d, s%d, 1', s_wr, s_w)
    k.e('s_lshr_b32 s%d, s%d, 1', s_wc, s_w)
    vGA, vGH, vW0, vW1 = 11, 12, 13, 14
    k.e('s_lshl_b32 s%d, s%d, 2', s_t0, s_w)
    k.e('v_add_u32 v4, s%d, v%d', s_t0, vG)
    k.e('s_lshl_b32 s%d, s%d, 6', s_t1, s_rb)
    k.e('v_add_u32 v5, s%d, v4', s_t1)
    k.e('v_lshlrev_b32 v5, 10, v5')
    k.e('v_lshl_add_u32 v%d, v%d, 4, v5', vGA, vI)
    k.e('v_subrev_u32 v%d, 0x4000, v%d', vGH, vGA)
    k.e('v_and_b32 v5, 15, v4')
    k.e('v_xor_b32 v5, v5, v%d', vI)
    k.e('v_lshlrev_b32 v5, 4, v5')
    k.e('v_lshl_add_u32 v%d, v4, 10, v5', vW0)
    k.e('v_add_u32 v%d, 0x10000, v%d', vW1, vW0)
    k.karg_finish(srds_c)
    vAD = 32
    k.e('s_mov_b32 s%d, 0x8000', s_t1)
    lskip = k.newlabel()
    if attn:
        k.e('s_cmp_ge_u32 s%d, 4', s_w)
        k.e('s_cbranch_scc1 %s', lskip)
        for q in range(4):
            k.e('buffer_load_dwordx4 %s, v%d, s[%d:%d], 0 offen offset:%d', vr(vAD + 32 + q * 4, 4), vGH, SA, SA + 3, q * 256)
        k.label(lskip)
    for p in range(2):
        for q in range(4):
            k.e('buffer_load_dwordx4 %s, v%d, s[%d:%d], %s offen offset:%d', vr(vAD + p * 16 + q * 4, 4), vGA, SA, SA + 3,
                ('s%d' % s_t1) if p else '0', q * 256)
    k.e('s_barrier')
    k.stamp()
    vA, vH, vB = 16, 20, 24
    k.e('s_lshl_b32 s%d, s%d, 15', s_t0, s_wr)
    k.e('v_xor_b32 v4, v%d, v%d', vG, vI)
    k.e('v_and_b32 v4, 3, v4')
    k.e('v_and_b32 v5, 12, v%d', vI)
    for b in range(4):
        k.e('v_xor_b32 v6, %d, v5', b << 2)
        k.e('v_or_b32 v6, v6, v4')
        k.e('v_lshlrev_b32 v6, 4, v6')
        k.e('v_lshl_add_u32 v6, v%d, 10, v6', vI)
        k.e('v_add_u32 v%d, s%d, v6', vA + b, s_t0)
        if attn:
            k.e('v_add_u32 v%d, 0x10000, v6', vH + b)
    k.e('v_lshrrev_b32 v4, 2, v%d', vI)
    k.e('v_lshl_add_u32 v4, v%d, 3, v4', vG)
    k.e('v_mul_u32_u24 v4, 384, v4')
    k.e('v_and_b32 v5, 3, v%d', vI)
    k.e('v_lshl_add_u32 v4, v5, 3, v4')
    k.e('v_add_u32 v4, %d, v4', B_OFF)
    k.e('v_bfe_u32 v5, v%d, 3, 1', vI)
    k.e('v_and_b32 v6, 1, v%d', vG)
    k.e('v_lshl_add_u32 v5, v6, 1, v5')
    for j in range(3):
        if attn:
            if j == 0:
                k.e('s_mov_b32 s%d, s%d', s_t1, s_wc)
            elif j == 1:
                k.e('s_lshl_b32 s%d, s%d, 2', s_t1, s_wr)
                k.e('s_add_u32 s%d, s%d, s%d', s_t1, s_t1, s_wc)
                k.e('s_add_u32 s%d, s%d, 4', s_t1, s_t1)
            else:
                k.e('s_lshl_b32 s%d, s%d, 2', s_t1, s_wr)
                k.e('s_sub_u32 s%d, s%d, s%d', s_t1, s_wc, s_t1)
                k.e('s_add_u32 s%d, s%d, 8', s_t1, s_t1)
        else:
            k.e('s_mul_i32 s%d, s%d, 3', s_t1, s_wc)
            k.e('s_add_u32 s%d, s%d, %d', s_t1, s_t1, j)
        k.e('v_xor_b32 v6, s%d, v5', s_t1)
        k.e('v_lshl_add_u32 v%d, v6, 5, v4', vB + j)
    vF = 80
    vs, vq, vm, vrr, t0, t1 = 4, 6, 112, 114, 30, 15

    def ln_pass(p, wait):
        k.e('s_waitcnt vmcnt(%d)', wait)
        a = vAD + p * 16
        for i in range(16):
            k.e('v_lshlrev_b32 v%d, 16, v%d', vF + 2 * i, a + i)
            k.e('v_and_b32 v%d, 0xffff0000, v%d', vF + 2 * i + 1, a + i)
        k.e('v_pk_add_f32 %s, %s, %s', vr(vs, 2), vr(vF, 2), vr(vF + 2, 2))
        k.e('v_pk_mul_f32 %s, %s, %s', vr(vq, 2), vr(vF, 2), vr(vF, 2))
        k.e('v_pk_fma_f32 %s, %s, %s, %s', vr(vq, 2), vr(vF + 2, 2), vr(vF + 2, 2), vr(vq, 2))
        for i in range(2, 16):
            k.e('v_pk_add_f32 %s, %s, %s', vr(vs, 2), vr(vs, 2), vr(vF + 2 * i, 2))
            k.e('v_pk_fma_f32 %s, %s, %s, %s', vr(vq, 2), vr(vF + 2 * i, 2), vr(vF + 2 * i, 2), vr(vq, 2))
        k.e('v_add_f32 v%d, v%d, v%d', vs, vs, vs + 1)
        k.e('v_add_f32 v%d, v%d, v%d', vq, vq, vq + 1)
        for sh in (8, 4, 2, 1):
            k.nop(2)
            k.e('v_add_f32_dpp v%d, v%d, v%d row_ror:%d row_mask:0xf bank_mask:0xf', vs, vs, vs, sh)
            k.e('v_add_f32_dpp v%d, v%d, v%d row_ror:%d row_mask:0xf bank_mask:0xf', vq, vq, vq, sh)
        ln_stats(k, vs, vq, 1.0 / 512, vm, vrr, t0, t1)
        k.e('v_sub_f32 v%d, 0, v%d', vm, vm)
        k.e('v_mov_b32 v%d, v%d', vm + 1, vm)
        k.e('v_mov_b32 v%d, v%d', vrr + 1, vrr)
        for i in range(16):
            f = vF + 2 * i
            k.e('v_pk_add_f32 %s, %s, %s', vr(f, 2), vr(f, 2), vr(vm, 2))
            k.e('v_cvt_pk_bf16_f32 v%d, v%d, v%d', a + i, f, f + 1)
            k.e('v_lshlrev_b32 v%d, 16, v%d', f, a + i)
            k.e('v_and_b32 v%d, 0xffff0000, v%d', f + 1, a + i)
            k.e('v_pk_mul_f32 %s, %s, %s', vr(f, 2), vr(f, 2), vr(vrr, 2))
            k.e('v_cvt_pk_bf16_f32 v%d, v%d, v%d', a + i, f, f + 1)
        for q in range(4):
            if p < 2:
                k.e('ds_write_b128 v%d, %s offset:%d', vW0, vr(a + q * 4, 4), p * 32768 + q * 256)
            else:
                k.e('ds_write_b128 v%d, %s offset:%d', vW1, vr(a + q * 4, 4), q * 256)

    if attn:
        l47 = k.newlabel()
        k.e('s_cmp_ge_u32 s%d, 4', s_w)
        k.e('s_cbranch_scc1 %s', l47)
        ln_pass(2, 8)
        k.label(l47)
    ln_pass(0, 4)
    ln_pass(1, 0)
    k.stamp()
    k.e('s_waitcnt lgkmcnt(0)')
    k.e('s_barrier')
    k.stamp()
    FR = [32, 56]
    vACC = 80
    nacc = 7 if attn else 6
    for i in range(nacc * 4):
        k.e('v_mov_b32 v%d, 0', vACC + i)

    def read_frags(KS):
        fs = FR[KS & 1]
        kc, ks = KS >> 1, KS & 1
        slot = kc % NS
        a_, b_ = KS >> 2, KS & 3
        k.e('ds_read_b128 %s, v%d offset:%d', vr(fs, 4), vA + b_, a_ * 256)
        k.e('ds_read_b128 %s, v%d offset:%d', vr(fs + 4, 4), vA + b_, a_ * 256 + 16384)
        if attn:
            k.e('ds_read_b128 %s, v%d offset:%d', vr(fs + 8, 4), vH + b_, a_ * 256)
        for j in range(3):
            for hh in range(2):
                k.e('ds_read_b64_tr_b16 %s, v%d offset:%d', vr(fs + 12 + j * 4 + hh * 2, 2), vB + j,
                    slot * BST + (ks * 32 + hh * 4) * 384)

    def mfmas(KS):
        fs = FR[KS & 1]
        for j in range(3):
            for r in range(2):
                acc = vACC + (r * 3 + j) * 4
                k.e('v_mfma_f32_16x16x32_bf16 %s, %s, %s, %s', vr(acc, 4), vr(fs + 12 + j * 4, 4), vr(fs + r * 4, 4), vr(acc, 4))
            if attn and j == 1:
                acc = vACC + 24
                k.e('v_mfma_f32_16x16x32_bf16 %s, %s, %s, %s', vr(acc, 4), vr(fs + 16, 4), vr(fs + 8, 4), vr(acc, 4))

    read_frags(0)
    for KS in range(16):
        if KS + 1 < 16:
            if (KS + 1) & 1 == 0:
                k.e('s_waitcnt lgkmcnt(0)')
                k.e('s_barrier')
                read_frags(KS + 1)
                mfmas(KS)
                continue
            read_frags(KS + 1)
            k.e('s_waitcnt lgkmcnt(%d)', 9 if attn else 8)
        else:
            k.e('s_waitcnt lgkmcnt(0)')
        mfmas(KS)
    k.nop(10)
    k.stamp()
    if attn:
        k.e('s_barrier')
        RS = 400
        vE0, vE1, vE2, vEH = 4, 5, 6, 7
        k.e('s_mul_i32 s%d, s%d, %d', s_t0, s_wr, 32 * RS)
        k.e('s_mul_i32 s%d, s%d, 96', s_t1, s_wc)
        k.e('v_mul_u32_u24 v%d, %d, v%d', vEH, RS, vI)
        k.e('v_lshl_add_u32 v%d, v%d, 3, v%d', vEH, vG, vEH)
        k.e('v_add_u32 v%d, s%d, v%d', vEH, s_t1, vEH)
        k.e('s_add_u32 s%d, s%d, %d', s_t0, s_t0, 16 * RS)
        k.e('v_add_u32 v%d, s%d, v%d', vE0, s_t0, vEH)
        k.e('s_lshl_b32 s%d, s%d, 5', s_t1, s_wr)
        k.e('v_add_u32 v%d, s%d, v%d', vE1, s_t1, vE0)
        k.e('v_add_u32 v%d, 32, v%d', vE1, vE1)
        k.e('v_subrev_u32 v%d, s%d, v%d', vE2, s_t1, vE0)
        k.e('v_add_u32 v%d, 64, v%d', vE2, vE2)
        k.e('v_add_u32 v%d, s%d, v%d', vEH, s_t1, vEH)
        k.e('v_add_u32 v%d, 32, v%d', vEH, vEH)
        vP = 32
        n = 0
        for r in range(2):
            for j in range(3):
                acc = vACC + (r * 3 + j) * 4
                pk = vP + 2 * n
                n += 1
                k.e('v_cvt_pk_bf16_f32 v%d, v%d, v%d', pk, acc, acc + 1)
                k.e('v_cvt_pk_bf16_f32 v%d, v%d, v%d', pk + 1, acc + 2, acc + 3)
                k.e('ds_write_b64 v%d, %s offset:%d', (vE0, vE1, vE2)[j], vr(pk, 2), r * 16 * RS)
        pk = vP + 2 * n
        k.e('v_cvt_pk_bf16_f32 v%d, v%d, v%d', pk, vACC + 24, vACC + 25)
        k.e('v_cvt_pk_bf16_f32 v%d, v%d, v%d', pk + 1, vACC + 26, vACC + 27)
        k.e('ds_write_b64 v%d, %s', vEH, vr(pk, 2))
        k.e('s_waitcnt lgkmcnt(0)')
        k.e('s_barrier')
        k.e('s_cmp_ge_u32 s%d, 4', s_w)
        k.e('s_cbranch_scc1 %s', k.endl)
        vb = 4
        k.e('s_mul_i32 s%d, s%d, 96', s_t0, s_w)
        k.e('v_mul_u32_u24 v%d, %d, v%d', vb, RS, vL)
        k.e('v_add_u32 v%d, s%d, v%d', vb, s_t0, vb)
        vQ, vKK = 32, 40
        k.e('ds_read_b128 %s, v%d offset:%d', vr(vQ, 4), vb, 16 * RS)
        k.e('ds_read_b128 %s, v%d offset:%d', vr(vQ + 4, 4), vb, 16 * RS + 16)
        for w in range(8):
            k.e('ds_read_b128 %s, v%d offset:%d', vr(vKK + w * 8, 4), vb, (16 - 2 * w) * RS + 32)
            k.e('ds_read_b128 %s, v%d offset:%d', vr(vKK + w * 8 + 4, 4), vb, (16 - 2 * w) * RS + 48)
        vLG, vS = 8, 5
        k.e('s_lshl_b32 s%d, s%d, 6', s_t0, s_rb)
        k.e('v_add_u32 v%d, s%d, v%d', vS, s_t0, vL)
        k.e('v_mov_b32 v6, 0x%08x', f2u(-1e9))
        for w in range(8):
            k.e('v_mov_b32 v%d, 0', vLG + w)
        for w in range(8):
            k.e('s_waitcnt lgkmcnt(%d)', 14 - 2 * w)
            for d in range(8):
                k.e('v_dot2_f32_bf16 v%d, v%d, v%d, v%d', vLG + w, vQ + d, vKK + w * 8 + d, vLG + w)
        vVV = vKK
        for w in range(8):
            k.e('ds_read_b128 %s, v%d offset:%d', vr(vVV + w * 8, 4), vb, (16 - 2 * w) * RS + 64)
            k.e('ds_read_b128 %s, v%d offset:%d', vr(vVV + w * 8 + 4, 4), vb, (16 - 2 * w) * RS + 80)
        for w in range(8):
            round_bf16(k, vLG + w, vLG + w)
            k.e('v_mul_f32 v%d, 0.25, v%d', vLG + w, vLG + w)
            if w:
                k.e('v_cmp_le_u32 vcc, %d, v%d', 2 * w, vS)
                k.nop(2)
                k.e('v_cndmask_b32 v%d, v6, v%d, vcc', vLG + w, vLG + w)
        k.e('v_max3_f32 v7, v%d, v%d, v%d', vLG, vLG + 1, vLG + 2)
        k.e('v_max3_f32 v7, v7, v%d, v%d', vLG + 3, vLG + 4)
        k.e('v_max3_f32 v7, v7, v%d, v%d', vLG + 5, vLG + 6)
        k.e('v_max_f32 v7, v7, v%d', vLG + 7)
        for w in range(8):
            k.e('v_sub_f32 v%d, v%d, v7', vLG + w, vLG + w)
            k.e('v_mul_f32 v%d, 0x%08x, v%d', vLG + w, f2u(1.4426950408889634), vLG + w)
            k.e('v_exp_f32 v%d, v%d', vLG + w, vLG + w)
        k.nop(1)
        k.e('v_add_f32 v7, v%d, v%d', vLG, vLG + 1)
        for w in range(2, 8):
            k.e('v_add_f32 v7, v7, v%d', vLG + w)
        k.e('v_rcp_f32 v7, v7')
        k.nop(1)
        for w in range(8):
            k.e('v_mul_f32 v%d, v%d, v7', vLG + w, vLG + w)
        vPP = 16
        for w2 in range(4):
            k.e('v_cvt_pk_bf16_f32 v%d, v%d, v%d', vPP + w2, vLG + 2 * w2, vLG + 2 * w2 + 1)
        vO, vT = 104, 20
        k.e('s_mov_b32 s%d, 0x05040100', s_t0)
        k.e('s_mov_b32 s%d, 0x07060302', s_t1)
        for i in range(16):
            k.e('v_mov_b32 v%d, 0', vO + i)
        for w2 in range(4):
            k.e('s_waitcnt lgkmcnt(%d)', 12 - 4 * w2)
            for d in range(8):
                va, vb_ = vVV + (2 * w2) * 8 + d, vVV + (2 * w2 + 1) * 8 + d
                t = vT + 2 * (d & 1)
                k.e('v_perm_b32 v%d, v%d, v%d, s%d', t, vb_, va, s_t0)
                k.e('v_perm_b32 v%d, v%d, v%d, s%d', t + 1, vb_, va, s_t1)
                k.e('v_dot2_f32_bf16 v%d, v%d, v%d, v%d', vO + 2 * d, t, vPP + w2, vO + 2 * d)
                k.e('v_dot2_f32_bf16 v%d, v%d, v%d, v%d', vO + 2 * d + 1, t + 1, vPP + w2, vO + 2 * d + 1)
        k.nop(3)
        vOP = 24
        for i in range(8):
            k.e('v_cvt_pk_bf16_f32 v%d, v%d, v%d', vOP + i, vO + 2 * i, vO + 2 * i + 1)
        k.e('s_lshl_b32 s%d, s%d, 2', s_t0, s_cg)
        k.e('s_add_u32 s%d, s%d, s%d', s_t0, s_t0, s_w)
        k.e('s_lshl_b32 s%d, s%d, 5', s_t0, s_t0)
        k.e('v_lshlrev_b32 v%d, 10, v%d', vS, vS)
        k.e('v_add_u32 v%d, s%d, v%d', vS, s_t0, vS)
        k.e('buffer_store_dwordx4 %s, v%d, s[%d:%d], 0 offen', vr(vOP, 4), vS, SO, SO + 3)
        k.e('buffer_store_dwordx4 %s, v%d, s[%d:%d], 0 offen offset:16', vr(vOP + 4, 4), vS, SO, SO + 3)
    else:
        k.e('s_mov_b32 s%d, 0x%08x', SG_C1, f2u(GELU_C1))
        k.e('v_mov_b32 v%d, 0x%08x', V_C0, f2u(GELU_C0))
        vE = 4
        k.e('s_lshl_b32 s%d, s%d, 6', s_t0, s_rb)
        k.e('s_lshl_b32 s%d, s%d, 5', s_t1, s_wr)
        k.e('s_add_u32 s%d, s%d, s%d', s_t0, s_t0, s_t1)
        k.e('v_add_u32 v%d, s%d, v%d', vE, s_t0, vI)
        k.e('s_mov_b32 s%d, 2752', s_t1)
        k.e('v_mul_lo_u32 v%d, v%d, s%d', vE, vE, s_t1)
        k.e('s_mul_i32 s%d, s%d, 3', s_t0, s_wc)
        k.e('s_add_u32 s%d, s%d, s%d', s_t0, s_t0, s_start)
        k.e('s_lshl_b32 s%d, s%d, 5', s_t0, s_t0)
        k.e('v_lshl_add_u32 v%d, v%d, 3, v%d', vE, vG, vE)
        k.e('v_add_u32 v%d, s%d, v%d', vE, s_t0, vE)
        k.e('s_mov_b32 s%d, %d', s_t1, 16 * 2752)
        for r in range(2):
            for j in range(3):
                acc = vACC + (r * 3 + j) * 4
                pk = 32 + (r * 3 + j) * 2
                k.e('v_cvt_pk_bf16_f32 v%d, v%d, v%d', pk, acc, acc + 1)
                k.e('v_cvt_pk_bf16_f32 v%d, v%d, v%d', pk + 1, acc + 2, acc + 3)
                k.e('v_lshlrev_b32 v%d, 16, v%d', acc, pk)
                k.e('v_and_b32 v%d, 0xffff0000, v%d', acc + 1, pk)
                k.e('v_lshlrev_b32 v%d, 16, v%d', acc + 2, pk + 1)
                k.e('v_and_b32 v%d, 0xffff0000, v%d', acc + 3, pk + 1)
                gelu4(k, acc, 8)
                k.e('v_cvt_pk_bf16_f32 v%d, v%d, v%d', pk, acc, acc + 1)
                k.e('v_cvt_pk_bf16_f32 v%d, v%d, v%d', pk + 1, acc + 2, acc + 3)
                k.e('buffer_store_dwordx2 %s, v%d, s[%d:%d], %s offen offset:%d', vr(pk, 2), vE, SO, SO + 3,
                    ('s%d' % s_t1) if r else '0', j * 32)
    k.stamp()
    if STAMPS:
        k.e('s_waitcnt vmcnt(0)')
    k.stamp()
    k.dump_stamps(s_w)
    k.e('s_branch %s', k.endl)
    k.label(lload)
    vBD = 8
    k.e('s_sub_u32 s%d, s%d, 8', s_w, s_w)
    k.e('s_mul_i32 s%d, s%d, 768', s_t0, s_w)
    k.e('s_mov_b32 s%d, 43691', s_t1)
    if attn:
        k.e('s_lshl_b32 s%d, s%d, 7', s_mb, s_cg)
    else:
        k.e('s_lshl_b32 s%d, s%d, 5', s_mb, s_start)
    k.e('s_mov_b32 s%d, %d', s_start, ldb)
    for p in range(12):
        sg, kk, c, t, tmp = 32, 33, 34, 35, 36
        k.e('v_add_u32 v%d, s%d, v%d', sg, s_t0, vL)
        if p:
            k.e('v_add_u32 v%d, %d, v%d', sg, 64 * p, sg)
        k.e('v_mul_lo_u32 v%d, v%d, s%d', kk, sg, s_t1)
        k.e('v_lshrrev_b32 v%d, 20, v%d', kk, kk)
        k.e('v_mul_u32_u24 v%d, 24, v%d', c, kk)
        k.e('v_sub_u32 v%d, v%d, v%d', c, sg, c)
        k.e('v_bfe_u32 v%d, v%d, 1, 1', tmp, kk)
        k.e('v_bfe_u32 v%d, v%d, 3, 1', t, kk)
        k.e('v_lshl_add_u32 v%d, v%d, 1, v%d', tmp, t, tmp)
        k.e('v_lshlrev_b32 v%d, 1, v%d', tmp, tmp)
        k.e('v_xor_b32 v%d, v%d, v%d', c, c, tmp)
        if attn:
            k.e('v_lshrrev_b32 v%d, 3, v%d', t, c)
            k.e('v_and_b32 v%d, 7, v%d', c, c)
            k.e('v_lshlrev_b32 v%d, 4, v%d', c, c)
            k.e('v_lshl_add_u32 v%d, v%d, 10, v%d', sg, t, c)
        else:
            k.e('v_lshlrev_b32 v%d, 4, v%d', sg, c)
        k.e('v_add_u32 v%d, s%d, v%d', sg, s_mb, sg)
        k.e('v_mul_lo_u32 v%d, v%d, s%d', kk, kk, s_start)
        k.e('v_add_u32 v%d, v%d, v%d', vBD + p, kk, sg)
    k.e('s_mul_i32 s%d, s%d, 12288', s_mb, s_w)
    k.e('s_add_u32 s%d, s%d, %d', s_mb, s_mb, B_OFF)
    k.karg_finish(srds_l)

    def issue_dma(kc):
        slot = kc % NS
        k.e('s_mov_b32 s%d, %d', s_t0, kc * 64 * ldb)
        for p in range(12):
            k.e('s_add_u32 m0, s%d, %d', s_mb, slot * BST + p * 1024)
            k.nop(1)
            k.e('buffer_load_dwordx4 v%d, s[%d:%d], s%d offen lds', vBD + p, SB, SB + 3, s_t0)

    k.e('s_barrier')
    for kc in range(NS):
        issue_dma(kc)
    k.e('s_waitcnt vmcnt(24)')
    k.e('s_barrier')
    for kc in range(7):
        last = min(kc + NS - 1, 7)
        k.e('s_waitcnt vmcnt(%d)', 12 * (last - (kc + 1)))
        k.e('s_barrier')
        if kc + NS <= 7:
            issue_dma(kc + NS)
    return k, lds, 120, 640


def gen_dmagemm(name, mode, asrc, lda, bsrc, ldb, Kdim, osrc, ldo, rsrc, ldr, bias=None):
    k = K(name)
    BN = 64 if mode == 'res' else 96
    NTW = BN // 32
    BROW = BN * 2
    BST_B = 64 * BROW
    ST = 8192 + BST_B
    NSTG = (Kdim + 63) // 64
    NS = min(NSTG, 163840 // ST)
    lds = NS * ST
    PB = BST_B // 1024 // 4
    NDMA = 2 + PB
    SA, SB, SO, SR, SBI = 4, 8, 12, 16, 20
    s_rb, s_cg, s_w, s_wr, s_wc, s_ma, s_mb, s_t0, s_t1, s_start, s_t2 = 24, 25, 26, 27, 28, 29, 30, 31, 32, 33, 34
    k.e('s_cmp_ge_u32 s2, 256')
    k.e('s_cbranch_scc1 %s', k.endl)
    srds_l = [(SA, asrc), (SB, bsrc)]
    srds_c = [(SO, osrc), (SR, rsrc)] + ([(SBI, bias)] if bias else [])
    k.karg_issue(srds_l + srds_c)
    k.stamp()
    decode_wg(k, s_rb, s_cg)
    vL, vI, vG = 1, 2, 3
    k.e('v_and_b32 v%d, 63, v0', vL)
    k.e('v_lshrrev_b32 v4, 6, v0')
    k.e('v_and_b32 v%d, 15, v0', vI)
    k.e('v_readfirstlane_b32 s%d, v4', s_w)
    k.e('v_bfe_u32 v%d, v0, 4, 2', vG)
    if mode == 'gate':
        k.e('s_mul_i32 s%d, s%d, %d', s_start, s_cg, 37 * 9363)
        k.e('s_lshr_b32 s%d, s%d, 16', s_start, s_start)
    else:
        k.e('s_lshl_b32 s%d, s%d, 2', s_start, s_cg)
    lload = k.newlabel('Lloader')
    k.e('s_cmp_ge_u32 s%d, 4', s_w)
    k.e('s_cbranch_scc1 %s', lload)
    k.e('s_and_b32 s%d, s%d, 1', s_wr, s_w)
    k.e('s_lshr_b32 s%d, s%d, 1', s_wc, s_w)
    vE, vER, vRES, vBI = 16, 17, 32, 48
    k.e('s_lshl_b32 s%d, s%d, 6', s_t0, s_rb)
    k.e('s_lshl_b32 s%d, s%d, 5', s_t1, s_wr)
    k.e('s_add_u32 s%d, s%d, s%d', s_t0, s_t0, s_t1)
    k.e('v_add_u32 v4, s%d, v%d', s_t0, vI)
    k.e('s_mul_i32 s%d, s%d, %d', s_t2, s_wc, NTW)
    k.e('s_add_u32 s%d, s%d, s%d', s_t2, s_t2, s_start)
    k.e('s_lshl_b32 s%d, s%d, 5', s_t2, s_t2)
    k.e('s_mov_b32 s%d, %d', s_t1, ldo)
    k.e('v_mul_lo_u32 v%d, v4, s%d', vE, s_t1)
    k.e('v_lshl_add_u32 v%d, v%d, 3, v%d', vE, vG, vE)
    k.e('v_add_u32 v%d, s%d, v%d', vE, s_t2, vE)
    k.e('s_mov_b32 s%d, %d', s_t1, ldr)
    k.e('v_mul_lo_u32 v%d, v4, s%d', vER, s_t1)
    k.e('v_lshl_add_u32 v%d, v%d, 3, v%d', vER, vG, vER)
    k.e('v_add_u32 v%d, s%d, v%d', vER, s_t2, vER)
    k.e('v_lshlrev_b32 v18, 1, v4')
    s_ro, s_oo = 35, 36
    k.e('s_mov_b32 s%d, %d', s_ro, 16 * ldr)
    k.e('s_mov_b32 s%d, %d', s_oo, 16 * ldo)
    vA, vB, vAc, vBc = 20, 22, 26, 28
    k.e('s_lshl_b32 s%d, s%d, 12', s_t0, s_wr)
    k.e('v_lshrrev_b32 v4, 1, v%d', vI)
    k.e('v_xor_b32 v5, v%d, v4', vG)
    k.e('v_and_b32 v5, 3, v5')
    k.e('v_and_b32 v4, 4, v4')
    for ks in range(2):
        k.e('v_xor_b32 v6, %d, v4', ks << 2)
        k.e('v_or_b32 v6, v6, v5')
        k.e('v_lshlrev_b32 v6, 4, v6')
        k.e('v_lshl_add_u32 v6, v%d, 7, v6', vI)
        k.e('v_add_u32 v%d, s%d, v6', vA + ks, s_t0)
    k.e('v_lshrrev_b32 v4, 2, v%d', vI)
    k.e('v_lshl_add_u32 v4, v%d, 3, v4', vG)
    k.e('v_mul_u32_u24 v4, %d, v4', BROW)
    k.e('v_and_b32 v5, 3, v%d', vI)
    k.e('v_lshl_add_u32 v4, v5, 3, v4')
    k.e('v_add_u32 v4, 0x2000, v4')
    k.e('v_and_b32 v6, 1, v%d', vG)
    k.e('s_mul_i32 s%d, s%d, %d', s_t0, s_wc, NTW)
    if BN == 64:
        k.e('v_bfe_u32 v5, v%d, 3, 1', vI)
        k.e('v_lshl_add_u32 v5, v6, 1, v5')
        for j in range(NTW):
            k.e('s_add_u32 s%d, s%d, %d', s_t1, s_t0, j)
            k.e('v_xor_b32 v7, s%d, v5', s_t1)
            k.e('v_lshl_add_u32 v%d, v7, 5, v4', vB + j)
    else:
        for j in range(NTW):
            k.e('s_add_u32 s%d, s%d, %d', s_t1, s_t0, j)
            k.e('v_add_u32 v7, s%d, v6', s_t1)
            k.e('v_subrev_u32 v13, 6, v7')
            k.e('v_cmp_le_u32 vcc, 6, v7')
            k.nop(2)
            k.e('v_cndmask_b32 v7, v7, v13, vcc')
            k.e('v_lshl_add_u32 v%d, v7, 5, v4', vB + j)
    FSZ = 16 + NTW * 8
    FR = [64, 64 + FSZ]
    vACC = 64 + 2 * FSZ
    for i in range(2 * NTW * 4):
        k.e('v_mov_b32 v%d, 0', vACC + i)
    k.karg_finish(srds_c)
    k.stamp()

    def read_frags(kc):
        fs = FR[kc & 1]
        sb = (kc % NS) * ST
        if sb:
            for ks in range(2):
                k.e('v_add_u32 v%d, 0x%x, v%d', vAc + ks, sb, vA + ks)
            for j in range(NTW):
                k.e('v_add_u32 v%d, 0x%x, v%d', vBc + j, sb, vB + j)
            a_, b_ = vAc, vBc
        else:
            a_, b_ = vA, vB
        for ks in range(2):
            for r in range(2):
                k.e('ds_read_b128 %s, v%d offset:%d', vr(fs + (ks * 2 + r) * 4, 4), a_ + ks, r * 2048)
            for j in range(NTW):
                for hh in range(2):
                    k.e('ds_read_b64_tr_b16 %s, v%d offset:%d', vr(fs + 16 + (ks * NTW + j) * 4 + hh * 2, 2), b_ + j,
                        (ks * 32 + hh * 4) * BROW)

    def mfmas(kc):
        fs = FR[kc & 1]
        for ks in range(2):
            for j in range(NTW):
                for r in range(2):
                    acc = vACC + (r * NTW + j) * 4
                    k.e('v_mfma_f32_16x16x32_bf16 %s, %s, %s, %s', vr(acc, 4), vr(fs + 16 + (ks * NTW + j) * 4, 4),
                        vr(fs + (ks * 2 + r) * 4, 4), vr(acc, 4))

    def epi_loads():
        for r in range(2):
            for j in range(NTW):
                k.e('buffer_load_dwordx2 %s, v%d, s[%d:%d], %s offen offset:%d', vr(vRES + (r * NTW + j) * 2, 2), vER, SR, SR + 3,
                    ('s%d' % s_ro) if r else '0', j * 32)
        if bias:
            k.e('buffer_load_ushort v%d, v18, s[%d:%d], 0 offen', vBI, SBI, SBI + 3)
            k.e('buffer_load_ushort v%d, v18, s[%d:%d], 0 offen offset:32', vBI + 1, SBI, SBI + 3)

    k.e('s_barrier')
    k.stamp()
    read_frags(0)
    for kc in range(NSTG):
        if kc and kc % 4 == 0:
            k.stamp()
        if kc == max(0, NSTG - 4):
            epi_loads()
        k.e('s_waitcnt lgkmcnt(0)')
        if kc + 1 < NSTG:
            k.e('s_barrier')
            read_frags(kc + 1)
        mfmas(kc)
    k.e('s_waitcnt vmcnt(0)')
    k.nop(8)
    k.stamp()
    for r in range(2):
        if bias:
            k.e('v_lshlrev_b32 v%d, 16, v%d', vBI + r, vBI + r)
        for j in range(NTW):
            acc = vACC + (r * NTW + j) * 4
            rs = vRES + (r * NTW + j) * 2
            k.e('v_cvt_pk_bf16_f32 v8, v%d, v%d', acc, acc + 1)
            k.e('v_cvt_pk_bf16_f32 v9, v%d, v%d', acc + 2, acc + 3)
            k.e('v_lshlrev_b32 v4, 16, v%d', rs)
            k.e('v_and_b32 v5, 0xffff0000, v%d', rs)
            k.e('v_lshlrev_b32 v6, 16, v%d', rs + 1)
            k.e('v_and_b32 v7, 0xffff0000, v%d', rs + 1)
            k.e('v_lshlrev_b32 v%d, 16, v8', acc)
            k.e('v_and_b32 v%d, 0xffff0000, v8', acc + 1)
            k.e('v_lshlrev_b32 v%d, 16, v9', acc + 2)
            k.e('v_and_b32 v%d, 0xffff0000, v9', acc + 3)
            if mode == 'res':
                k.e('v_pk_add_f32 %s, %s, v[4:5]', vr(acc, 2), vr(acc, 2))
                k.e('v_pk_add_f32 %s, %s, v[6:7]', vr(acc + 2, 2), vr(acc + 2, 2))
            else:
                for i in range(4):
                    k.e('v_add_f32 v%d, v%d, v%d', acc + i, acc + i, vBI + r)
                k.e('v_cvt_pk_bf16_f32 v8, v%d, v%d', acc, acc + 1)
                k.e('v_cvt_pk_bf16_f32 v9, v%d, v%d', acc + 2, acc + 3)
                k.e('v_lshlrev_b32 v%d, 16, v8', acc)
                k.e('v_and_b32 v%d, 0xffff0000, v8', acc + 1)
                k.e('v_lshlrev_b32 v%d, 16, v9', acc + 2)
                k.e('v_and_b32 v%d, 0xffff0000, v9', acc + 3)
                k.e('v_pk_mul_f32 %s, %s, v[4:5]', vr(acc, 2), vr(acc, 2))
                k.e('v_pk_mul_f32 %s, %s, v[6:7]', vr(acc + 2, 2), vr(acc + 2, 2))
            k.e('v_cvt_pk_bf16_f32 v%d, v%d, v%d', rs, acc, acc + 1)
            k.e('v_cvt_pk_bf16_f32 v%d, v%d, v%d', rs + 1, acc + 2, acc + 3)
            k.e('buffer_store_dwordx2 %s, v%d, s[%d:%d], %s offen offset:%d', vr(rs, 2), vE, SO, SO + 3,
                ('s%d' % s_oo) if r else '0', j * 32)
    if mode == 'gate':
        lz = k.newlabel()
        k.e('s_cmp_eq_u32 s%d, 7', s_cg)
        k.e('s_cbranch_scc0 %s', lz)
        k.e('s_cmp_eq_u32 s%d, 1', s_wc)
        k.e('s_cbranch_scc0 %s', lz)
        k.e('v_mov_b32 v4, 0')
        k.e('v_mov_b32 v5, 0')
        k.e('buffer_store_dwordx2 v[4:5], v%d, s[%d:%d], 0 offen offset:96', vE, SO, SO + 3)
        k.e('buffer_store_dwordx2 v[4:5], v%d, s[%d:%d], s%d offen offset:96', vE, SO, SO + 3, s_oo)
        k.label(lz)
    k.stamp()
    if STAMPS:
        k.e('s_waitcnt vmcnt(0)')
    k.stamp()
    k.dump_stamps(s_w)
    k.e('s_branch %s', k.endl)
    k.label(lload)
    k.e('s_sub_u32 s%d, s%d, 4', s_w, s_w)
    vAD, vBD = 8, 10
    k.e('v_lshrrev_b32 v4, 3, v%d', vL)
    k.e('v_and_b32 v5, 7, v%d', vL)
    k.e('s_lshl_b32 s%d, s%d, 4', s_t0, s_w)
    k.e('s_mov_b32 s%d, %d', s_t1, lda)
    k.e('s_lshl_b32 s%d, s%d, 6', s_t2, s_rb)
    for p in range(2):
        k.e('v_add_u32 v6, s%d, v4', s_t0)
        if p:
            k.e('v_add_u32 v6, 8, v6')
        k.e('v_bfe_u32 v7, v6, 1, 3')
        k.e('v_xor_b32 v7, v7, v5')
        k.e('v_add_u32 v6, s%d, v6', s_t2)
        k.e('v_mul_lo_u32 v6, v6, s%d', s_t1)
        k.e('v_lshl_add_u32 v%d, v7, 4, v6', vAD + p)
    k.e('s_mov_b32 s%d, %d', s_t1, ldb)
    if BN == 64:
        for p in range(2):
            k.e('v_add_u32 v6, s%d, v4', s_t0)
            if p:
                k.e('v_add_u32 v6, 8, v6')
            k.e('v_bfe_u32 v7, v6, 1, 1')
            k.e('v_bfe_u32 v13, v6, 3, 1')
            k.e('v_lshl_add_u32 v7, v13, 1, v7')
            k.e('v_lshrrev_b32 v13, 1, v5')
            k.e('v_xor_b32 v7, v7, v13')
            k.e('v_add_u32 v7, s%d, v7', s_start)
            k.e('v_lshlrev_b32 v7, 4, v7')
            k.e('v_and_b32 v13, 1, v5')
            k.e('v_lshl_add_u32 v7, v13, 3, v7')
            k.e('v_lshlrev_b32 v7, 1, v7')
            k.e('v_mul_lo_u32 v6, v6, s%d', s_t1)
            k.e('v_add_u32 v%d, v6, v7', vBD + p)
    else:
        k.e('s_mul_i32 s%d, s%d, 3072', s_t0, s_w)
        k.e('s_mul_i32 s%d, s%d, %d', s_t2, s_cg, 2048 * 192)
        k.e('s_add_u32 s%d, s%d, s%d', s_t0, s_t0, s_t2)
        k.e('v_lshlrev_b32 v6, 4, v%d', vL)
        for p in range(3):
            k.e('v_add_u32 v%d, s%d, v6', vBD + p, s_t0)
            if p:
                k.e('v_add_u32 v%d, %d, v%d', vBD + p, 1024 * p, vBD + p)
    k.e('s_lshl_b32 s%d, s%d, 11', s_ma, s_w)
    k.e('s_mul_i32 s%d, s%d, %d', s_mb, s_w, PB * 1024)
    k.e('s_add_u32 s%d, s%d, 8192', s_mb, s_mb)
    k.karg_finish(srds_l)

    def issue_dma(kc):
        slot = kc % NS
        k.e('s_mov_b32 s%d, %d', s_t0, kc * 128)
        k.e('s_mov_b32 s%d, %d', s_t1, kc * 64 * ldb)
        for p in range(2):
            k.e('s_add_u32 m0, s%d, %d', s_ma, slot * ST + p * 1024)
            k.nop(1)
            k.e('buffer_load_dwordx4 v%d, s[%d:%d], s%d offen lds', vAD + p, SA, SA + 3, s_t0)
        for p in range(PB):
            k.e('s_add_u32 m0, s%d, %d', s_mb, slot * ST + p * 1024)
            k.nop(1)
            k.e('buffer_load_dwordx4 v%d, s[%d:%d], s%d offen lds', vBD + p, SB, SB + 3, s_t1)

    nxt = 0
    for _ in range(min(2, NSTG)):
        issue_dma(nxt)
        nxt += 1
    k.e('s_waitcnt vmcnt(%d)', NDMA * (nxt - 1))
    k.e('s_barrier')
    for kc in range(NSTG - 1):
        for _ in range(2):
            if nxt < NSTG and nxt < kc + NS:
                issue_dma(nxt)
                nxt += 1
        k.e('s_waitcnt vmcnt(%d)', NDMA * (nxt - 1 - (kc + 1)))
        k.e('s_barrier')
    return k, lds, vACC + 2 * NTW * 4, 512


def gen_ln2(name):
    k = K(name)
    k.e('s_cmp_ge_u32 s2, 512')
    k.e('s_cbranch_scc1 %s', k.endl)
    srds = [(4, ('ws', Z_OFF, ZB)), (8, ('ws', Z2N_OFF, Z2T))]
    k.karg_issue(srds)
    k.e('v_and_b32 v1, 63, v0')
    k.e('v_lshrrev_b32 v2, 6, v0')
    k.e('s_lshl_b32 s16, s2, 2')
    k.e('v_add_u32 v2, s16, v2')
    k.e('s_mov_b32 s17, 2752')
    k.e('v_mul_lo_u32 v3, v2, s17')
    k.e('v_lshl_add_u32 v3, v1, 5, v3')
    k.e('v_add_u32 v3, 1376, v3')
    k.e('v_mov_b32 v5, 0x7ffff000')
    k.e('v_cmp_gt_u32 vcc, 43, v1')
    k.nop(2)
    k.e('v_cndmask_b32 v3, v5, v3, vcc')
    k.karg_finish(srds)
    k.e('buffer_load_dwordx4 v[8:11], v3, s[4:7], 0 offen')
    k.e('buffer_load_dwordx4 v[12:15], v3, s[4:7], 0 offen offset:16')
    k.e('v_mul_u32_u24 v4, 7, v1')
    k.e('v_add_u32 v4, 6, v4')
    k.e('v_mul_u32_u24 v4, 1772, v4')
    k.e('v_lshrrev_b32 v4, 16, v4')
    k.e('v_min_u32 v4, 7, v4')
    k.e('v_mul_u32_u24 v6, 192, v2')
    k.e('v_bfe_u32 v7, v2, 3, 1')
    k.e('v_add_u32 v7, v7, v1')
    k.e('s_mov_b32 s17, %d', 37 * 9363)
    k.e('s_mov_b32 s18, %d', 2048 * 192)
    for which, dst in ((0, 42), (1, 43)):
        if which:
            k.e('v_subrev_u32 v4, 1, v4')
        k.e('v_mul_lo_u32 v44, v4, s17')
        k.e('v_lshrrev_b32 v44, 16, v44')
        k.e('v_sub_u32 v45, v7, v44')
        k.e('v_sub_u32 v46, v1, v44')
        k.e('v_subrev_u32 v47, 6, v45')
        k.e('v_cmp_le_u32 vcc, 6, v45')
        k.nop(2)
        k.e('v_cndmask_b32 v45, v45, v47, vcc')
        k.e('v_mul_lo_u32 v47, v4, s18')
        k.e('v_add_u32 v47, v47, v6')
        k.e('v_lshl_add_u32 v%d, v45, 5, v47', dst)
        k.e('v_cmp_gt_u32 vcc, 6, v46')
        k.nop(2)
        k.e('v_cndmask_b32 v%d, v5, v%d, vcc', dst, dst)
        if which:
            k.e('v_cmp_gt_u32 vcc, 8, v4')
            k.nop(2)
            k.e('v_cndmask_b32 v%d, v5, v%d, vcc', dst, dst)
    k.e('v_cmp_gt_u32 vcc, 43, v1')
    k.nop(2)
    k.e('v_cndmask_b32 v42, v5, v42, vcc')
    k.e('v_cndmask_b32 v43, v5, v43, vcc')
    vF = 16
    k.e('s_waitcnt vmcnt(0)')
    for i in range(8):
        k.e('v_lshlrev_b32 v%d, 16, v%d', vF + 2 * i, 8 + i)
        k.e('v_and_b32 v%d, 0xffff0000, v%d', vF + 2 * i + 1, 8 + i)
    k.e('v_pk_add_f32 v[32:33], v[16:17], v[18:19]')
    k.e('v_pk_mul_f32 v[34:35], v[16:17], v[16:17]')
    k.e('v_pk_fma_f32 v[34:35], v[18:19], v[18:19], v[34:35]')
    for i in range(2, 8):
        k.e('v_pk_add_f32 v[32:33], v[32:33], %s', vr(vF + 2 * i, 2))
        k.e('v_pk_fma_f32 v[34:35], %s, %s, v[34:35]', vr(vF + 2 * i, 2), vr(vF + 2 * i, 2))
    k.e('v_add_f32 v32, v32, v33')
    k.e('v_add_f32 v34, v34, v35')
    for sh in (8, 4, 2, 1):
        k.nop(2)
        k.e('v_add_f32_dpp v32, v32, v32 row_ror:%d row_mask:0xf bank_mask:0xf', sh)
        k.e('v_add_f32_dpp v34, v34, v34 row_ror:%d row_mask:0xf bank_mask:0xf', sh)
    k.nop(2)
    for i, ln in enumerate((0, 16, 32)):
        k.e('v_readlane_b32 s%d, v32, %d', 20 + i, ln)
        k.e('v_readlane_b32 s%d, v34, %d', 24 + i, ln)
    k.nop(2)
    k.e('v_mov_b32 v32, s20')
    k.e('v_mov_b32 v34, s24')
    k.e('v_add_f32 v32, s21, v32')
    k.e('v_add_f32 v34, s25, v34')
    k.e('v_add_f32 v32, s22, v32')
    k.e('v_add_f32 v34, s26, v34')
    ln_stats(k, 32, 34, 1.0 / 688, 36, 38, 40, 41)
    k.e('v_sub_f32 v36, 0, v36')
    k.e('v_mov_b32 v37, v36')
    k.e('v_mov_b32 v39, v38')
    for i in range(8):
        f = vF + 2 * i
        k.e('v_pk_add_f32 %s, %s, v[36:37]', vr(f, 2), vr(f, 2))
        k.e('v_cvt_pk_bf16_f32 v%d, v%d, v%d', 8 + i, f, f + 1)
        k.e('v_lshlrev_b32 v%d, 16, v%d', f, 8 + i)
        k.e('v_and_b32 v%d, 0xffff0000, v%d', f + 1, 8 + i)
        k.e('v_pk_mul_f32 %s, %s, v[38:39]', vr(f, 2), vr(f, 2))
        k.e('v_cvt_pk_bf16_f32 v%d, v%d, v%d', 8 + i, f, f + 1)
    for a in (42, 43):
        k.e('buffer_store_dwordx4 v[8:11], v%d, s[8:11], 0 offen', a)
        k.e('buffer_store_dwordx4 v[12:15], v%d, s[8:11], 0 offen offset:16', a)
    return k, 0, 48, 256


def build():
    ws = lambda off, n: ('ws', off, n)
    kern = {}
    kern['k1a_kernel'] = gen_lngemm('k1a_kernel', True, ('A_x', 0, XB), ('wqkv', 0, 512 * 1536 * 2), 3072, ws(O_OFF, XB))
    kern['k1b_kernel'] = gen_lngemm('k1b_kernel', True, ws(X2_OFF, XB), ('wqkv', 0, 512 * 1536 * 2), 3072, ws(O_OFF, XB))
    kern['k2a_kernel'] = gen_dmagemm('k2a_kernel', 'res', ws(O_OFF, XB), 1024, ('wo', 0, 512 * 512 * 2), 1024, 512,
                                     ws(X1_OFF, XB), 1024, ('A_x', 0, XB), 1024)
    kern['k2b_kernel'] = gen_dmagemm('k2b_kernel', 'res', ws(O_OFF, XB), 1024, ('wo', 0, 512 * 512 * 2), 1024, 512,
                                     ws(X1_OFF, XB), 1024, ws(X2_OFF, XB), 1024)
    kern['k3_kernel'] = gen_lngemm('k3_kernel', False, ws(X1_OFF, XB), ('w_in', 0, 512 * 1376 * 2), 2752, ws(Z_OFF, ZB))
    kern['k3b_kernel'] = gen_ln2('k3b_kernel')
    kern['k4_kernel'] = gen_dmagemm('k4_kernel', 'gate', ('w_sp', 0, S * S * 2), 4096, ws(Z2N_OFF, Z2T), 192, 2048,
                                    ws(H_OFF, HB), LDH, ws(Z_OFF, ZB), 2752, bias=('b_sp', 0, S * 2))
    kern['k5a_kernel'] = gen_dmagemm('k5a_kernel', 'res', ws(H_OFF, HB), LDH, ('w_out', 0, 688 * 512 * 2), 1024, 688,
                                     ws(X2_OFF, XB), 1024, ws(X1_OFF, XB), 1024)
    kern['k5b_kernel'] = gen_dmagemm('k5b_kernel', 'res', ws(H_OFF, HB), LDH, ('w_out', 0, 688 * 512 * 2), 1024, 688,
                                     ('out', 0, XB), 1024, ws(X1_OFF, XB), 1024)
    order = ['k1a_kernel', 'k2a_kernel', 'k3_kernel', 'k3b_kernel', 'k4_kernel', 'k5a_kernel',
             'k1b_kernel', 'k2b_kernel', 'k3_kernel', 'k3b_kernel', 'k4_kernel', 'k5b_kernel']
    hdr = open('interleave_layers__sliding_local_dilated__mixer_gmlp__prompt.s.ref').read().split('\n')
    hdr = [l for l in hdr if l.startswith(';') and '@launch' not in l and 'Override launch' not in l and 'grid=ceil' not in l]
    out = hdr[:]
    for n in order:
        kk, lds, nv, blk = kern[n]
        grid = 512 if n == 'k3b_kernel' else 256
        out.append('; @launch kernel=%s grid=(%d,1,1) block=(%d,1,1) lds=%d' % (n, grid, blk, lds))
    out.append('.amdgcn_target "amdgcn-amd-amdhsa--gfx950"')
    out.append('.text')
    kds = []
    for n, (kk, lds, nv, blk) in kern.items():
        t, kd = kk.text(nv)
        out.append(t)
        kds.append(kd)
    out.append('.section .rodata,"a"')
    out += kds
    return '\n'.join(out)


if __name__ == '__main__':
    dst = sys.argv[1] if len(sys.argv) > 1 else 'interleave_layers__sliding_local_dilated__mixer_gmlp__prompt.s'
    open(dst, 'w').write(build())
```

```python
import sys, os, struct
STAMPS = bool(os.environ.get('STAMPS'))
S, D = 2048, 512
ROT = bool(os.environ.get('ROT'))
NOCONS = bool(os.environ.get('NOCONS'))
NOLOAD = bool(os.environ.get('NOLOAD'))
BURST = int(os.environ.get('BURST', '4'))
CODEPF = not os.environ.get('NOCODEPF')
F, FH = 1376, 688
MB = 1 << 20
O_OFF, X1_OFF, X2_OFF, Z_OFF, Z2N_OFF, H_OFF = 0, 2 * MB, 4 * MB, 6 * MB, 12 * MB, 16 * MB
XB = S * D * 2
ZB = S * F * 2
Z2T = 8 * S * 192
LDH = 1408
HB = S * LDH
KA = dict(A_x=0, wqkv=8, wo=16, B_x=24, w_in=32, w_sp=40, b_sp=48, w_out=56, out=64, dbg=72, ws=80)


def f2u(f):
    return struct.unpack('<I', struct.pack('<f', f))[0]


def vr(a, n):
    return 'v[%d:%d]' % (a, a + n - 1)


class K:
    def __init__(self, name):
        self.name = name
        self.L = []
        self.lbl = 0
        self.nst = 0
        self.endl = '.Lend_' + name

    def e(self, s, *a):
        self.L.append('  ' + (s % a if a else s))

    def label(self, n):
        self.L.append(n + ':')

    def newlabel(self, p='L'):
        self.lbl += 1
        return '.%s_%s_%d' % (p, self.name, self.lbl)

    def nop(self, n):
        while n > 0:
            m = min(n, 16)
            self.e('s_nop %d', m - 1)
            n -= m

    def stamp(self):
        if not STAMPS:
            return
        i = self.nst
        self.nst += 1
        self.e('s_memtime s[98:99]')
        self.e('s_waitcnt lgkmcnt(0)')
        self.e('s_mov_b32 s%d, s98', 60 + i)

    def dump_stamps(self, s_w):
        if not STAMPS:
            return
        l = self.newlabel()
        l2 = self.newlabel()
        self.e('s_cmp_lg_u32 s%d, 0', s_w)
        self.e('s_cbranch_scc1 %s', l)
        self.e('s_cmp_eq_u32 s2, 0')
        self.e('s_cselect_b32 s97, 0, 128')
        self.e('s_cbranch_scc1 %s', l2)
        self.e('s_cmp_lg_u32 s2, 129')
        self.e('s_cbranch_scc1 %s', l)
        self.label(l2)
        self.e('s_load_dwordx2 s[92:93], s[0:1], 72')
        self.e('s_waitcnt lgkmcnt(0)')
        self.e('s_mov_b32 s94, 256')
        self.e('s_mov_b32 s95, 0x00020000')
        self.e('v_mov_b32 v1, s97')
        for i in range(self.nst):
            self.e('v_mov_b32 v2, s%d', 60 + i)
            self.e('buffer_store_dword v2, v1, s[92:95], 0 offen offset:%d', 4 * i)
            self.nop(2)
        self.label(l)

    def karg_issue(self, srds):
        for sreg, src in srds:
            self.e('s_load_dwordx2 s[%d:%d], s[0:1], %d', sreg, sreg + 1, KA[src[0]])

    def karg_finish(self, srds):
        self.e('s_waitcnt lgkmcnt(0)')
        for sreg, (name, off, nbytes) in srds:
            if off:
                self.e('s_add_u32 s%d, s%d, 0x%x', sreg, sreg, off)
                self.e('s_addc_u32 s%d, s%d, 0', sreg + 1, sreg + 1)
            self.e('s_mov_b32 s%d, 0x%x', sreg + 2, nbytes)
            self.e('s_mov_b32 s%d, 0x00020000', sreg + 3)

    def text(self, nvgpr, nsgpr=100):
        out = ['.globl %s' % self.name, '.p2align 8', '.type %s,@function' % self.name, self.name + ':']
        out += self.L
        out += [self.endl + ':', '  s_endpgm']
        acc = (nvgpr + 3) // 4 * 4
        kd = ['.p2align 6', '.amdhsa_kernel %s' % self.name,
              '  .amdhsa_next_free_vgpr %d' % nvgpr, '  .amdhsa_next_free_sgpr %d' % nsgpr,
              '  .amdhsa_accum_offset %d' % acc, '  .amdhsa_group_segment_fixed_size 0',
              '  .amdhsa_kernarg_size 88', '  .amdhsa_user_sgpr_count 2',
              '  .amdhsa_user_sgpr_kernarg_segment_ptr 1', '  .amdhsa_system_sgpr_workgroup_id_x 1',
              '.end_amdhsa_kernel']
        return '\n'.join(out) + '\n', '\n'.join(kd) + '\n'


def emit_prefetch(k, prefetch, s_w, widx, vL, sbase, s_t0, s_t1, code=False):
    lnp = k.newlabel()
    k.e('s_cmp_lt_u32 s%d, %d', s_w, widx)
    k.e('s_cbranch_scc1 %s', lnp)
    psr = [(sbase + 4 * i, src) for i, src in enumerate(prefetch)]
    k.karg_issue(psr)
    k.e('s_lshl_b32 s%d, s2, 10', s_t0)
    k.e('v_lshlrev_b32 v4, 4, v%d', vL)
    k.e('v_add_u32 v4, s%d, v4', s_t0)
    k.karg_finish(psr)
    n = 0
    for sreg, src in psr:
        for off in range(0, src[2], 256 * 1024):
            k.e('s_mov_b32 s%d, %d', s_t1, off)
            k.e('buffer_load_dwordx4 %s, v4, s[%d:%d], s%d offen', vr(8 + 4 * (n % 16), 4), sreg, sreg + 3, s_t1)
            n += 1
    if code:
        lpc = k.newlabel()
        sc = sbase + 4 * len(prefetch)
        k.e('s_getpc_b64 s[%d:%d]', sc, sc + 1)
        k.label(lpc)
        k.e('s_mov_b32 s%d, .Ltext_end-%s', sc + 2, lpc)
        k.e('s_mov_b32 s%d, 0x00020000', sc + 3)
        k.e('s_lshr_b32 s%d, s2, 3', s_t0)
        k.e('s_lshl_b32 s%d, s%d, 10', s_t0, s_t0)
        k.e('v_lshlrev_b32 v4, 4, v%d', vL)
        k.e('v_add_u32 v4, s%d, v4', s_t0)
        for r in range(5):
            k.e('s_mov_b32 s%d, %d', s_t1, r * 32768)
            k.e('buffer_load_dwordx4 %s, v4, s[%d:%d], s%d offen', vr(8 + 4 * r, 4), sc, sc + 3, s_t1)
    k.e('s_branch %s', k.endl)
    k.label(lnp)


def round_bf16(k, dst, src):
    k.e('v_cvt_pk_bf16_f32 v%d, v%d, v%d', dst, src, src)
    k.e('v_lshlrev_b32 v%d, 16, v%d', dst, dst)


def ln_stats(k, vs, vq, inv_n, vm, vr_, t0, t1):
    k.e('v_mul_f32 v%d, 0x%08x, v%d', vs, f2u(inv_n), vs)
    k.e('v_mul_f32 v%d, 0x%08x, v%d', vq, f2u(inv_n), vq)
    k.e('v_fma_f32 v%d, -v%d, v%d, v%d', vq, vs, vs, vq)
    k.e('v_max_f32 v%d, 0, v%d', vq, vq)
    round_bf16(k, vm, vs)
    round_bf16(k, t0, vq)
    k.e('v_add_f32 v%d, 0x%08x, v%d', t0, f2u(1e-5), t0)
    round_bf16(k, t0, t0)
    k.e('v_sqrt_f32 v%d, v%d', t1, t0)
    k.nop(1)
    round_bf16(k, t1, t1)
    k.e('v_rcp_f32 v%d, v%d', vr_, t1)
    k.nop(1)


def decode_wg(k, s_rb, s_cg):
    k.e('s_and_b32 s%d, s2, 7', s_rb)
    k.e('s_lshl_b32 s%d, s%d, 2', s_rb, s_rb)
    k.e('s_lshr_b32 s%d, s2, 3', s_cg)
    k.e('s_and_b32 s%d, s%d, 3', s_cg, s_cg)
    k.e('s_add_u32 s%d, s%d, s%d', s_rb, s_rb, s_cg)
    k.e('s_lshr_b32 s%d, s2, 5', s_cg)


SG_C1 = 40
V_C0 = 31
GELU_C0 = -2.0 * 0.7978845608028654 * 1.4426950408889634
GELU_C1 = GELU_C0 * 0.044715


def gelu4(k, x, t):
    for i in range(4):
        k.e('v_mul_f32 v%d, v%d, v%d', t + i, x + i, x + i)
    for i in range(4):
        k.e('v_fma_f32 v%d, v%d, s%d, v%d', t + i, t + i, SG_C1, V_C0)
    for i in range(4):
        k.e('v_mul_f32 v%d, v%d, v%d', t + i, t + i, x + i)
    for i in range(4):
        k.e('v_exp_f32 v%d, v%d', t + i, t + i)
    for i in range(4):
        k.e('v_add_f32 v%d, 1.0, v%d', t + i, t + i)
    for i in range(4):
        k.e('v_rcp_f32 v%d, v%d', t + i, t + i)
    for i in range(4):
        k.e('v_mul_f32 v%d, v%d, v%d', x + i, x + i, t + i)


def gen_lngemm(name, attn, xsrc, wsrc, ldb, osrc, prefetch=None):
    k = K(name)
    A_ROWS = 80 if attn else 64
    B_OFF = A_ROWS * 1024
    BST = 24576
    NS = 3
    lds = B_OFF + NS * BST
    SA, SB, SO = 4, 8, 12
    s_rb, s_cg, s_w, s_wr, s_wc, s_mb, s_t0, s_t1, s_start = 16, 17, 18, 19, 20, 21, 22, 23, 24
    k.e('s_cmp_ge_u32 s2, 256')
    k.e('s_cbranch_scc1 %s', k.endl)
    srds_c = [(SA, xsrc), (SO, osrc)]
    srds_l = [(SB, wsrc)]
    k.karg_issue(srds_c + srds_l)
    k.stamp()
    decode_wg(k, s_rb, s_cg)
    vL, vI, vG = 1, 2, 3
    k.e('v_and_b32 v%d, 63, v0', vL)
    k.e('v_lshrrev_b32 v4, 6, v0')
    k.e('v_and_b32 v%d, 15, v0', vI)
    k.e('v_readfirstlane_b32 s%d, v4', s_w)
    k.e('v_bfe_u32 v%d, v0, 4, 2', vG)
    if not attn:
        k.e('s_mul_i32 s%d, s%d, %d', s_start, s_cg, 37 * 9363)
        k.e('s_lshr_b32 s%d, s%d, 16', s_start, s_start)
        k.e('s_lshl_b32 s%d, s%d, 1', s_start, s_start)
    lload = k.newlabel('Lloader')
    k.e('s_cmp_ge_u32 s%d, 8', s_w)
    k.e('s_cbranch_scc1 %s', lload)
    k.e('s_and_b32 s%d, s%d, 1', s_wr, s_w)
    k.e('s_lshr_b32 s%d, s%d, 1', s_wc, s_w)
    vGA, vGH, vW0, vW1 = 11, 12, 13, 14
    k.e('s_lshl_b32 s%d, s%d, 2', s_t0, s_w)
    k.e('v_add_u32 v4, s%d, v%d', s_t0, vG)
    k.e('s_lshl_b32 s%d, s%d, 6', s_t1, s_rb)
    k.e('v_add_u32 v5, s%d, v4', s_t1)
    k.e('v_lshlrev_b32 v5, 10, v5')
    k.e('v_lshl_add_u32 v%d, v%d, 4, v5', vGA, vI)
    k.e('v_subrev_u32 v%d, 0x4000, v%d', vGH, vGA)
    k.e('v_and_b32 v5, 15, v4')
    k.e('v_xor_b32 v5, v5, v%d', vI)
    k.e('v_lshlrev_b32 v5, 4, v5')
    k.e('v_lshl_add_u32 v%d, v4, 10, v5', vW0)
    k.e('v_add_u32 v%d, 0x10000, v%d', vW1, vW0)
    k.karg_finish(srds_c)
    vAD = 32
    k.e('s_mov_b32 s%d, 0x8000', s_t1)
    lskip = k.newlabel()
    if attn:
        k.e('s_cmp_ge_u32 s%d, 4', s_w)
        k.e('s_cbranch_scc1 %s', lskip)
        for q in range(4):
            k.e('buffer_load_dwordx4 %s, v%d, s[%d:%d], 0 offen offset:%d', vr(vAD + 32 + q * 4, 4), vGH, SA, SA + 3, q * 256)
        k.label(lskip)
    for p in range(2):
        for q in range(4):
            k.e('buffer_load_dwordx4 %s, v%d, s[%d:%d], %s offen offset:%d', vr(vAD + p * 16 + q * 4, 4), vGA, SA, SA + 3,
                ('s%d' % s_t1) if p else '0', q * 256)
    k.e('s_barrier')
    k.stamp()
    vA, vH, vB = 16, 20, 24
    k.e('s_lshl_b32 s%d, s%d, 15', s_t0, s_wr)
    k.e('v_xor_b32 v4, v%d, v%d', vG, vI)
    k.e('v_and_b32 v4, 3, v4')
    k.e('v_and_b32 v5, 12, v%d', vI)
    for b in range(4):
        k.e('v_xor_b32 v6, %d, v5', b << 2)
        k.e('v_or_b32 v6, v6, v4')
        k.e('v_lshlrev_b32 v6, 4, v6')
        k.e('v_lshl_add_u32 v6, v%d, 10, v6', vI)
        k.e('v_add_u32 v%d, s%d, v6', vA + b, s_t0)
        if attn:
            k.e('v_add_u32 v%d, 0x10000, v6', vH + b)
    k.e('v_lshrrev_b32 v4, 2, v%d', vI)
    k.e('v_lshl_add_u32 v4, v%d, 3, v4', vG)
    k.e('v_mul_u32_u24 v4, 384, v4')
    k.e('v_and_b32 v5, 3, v%d', vI)
    k.e('v_lshl_add_u32 v4, v5, 3, v4')
    k.e('v_add_u32 v4, %d, v4', B_OFF)
    k.e('v_bfe_u32 v5, v%d, 3, 1', vI)
    k.e('v_and_b32 v6, 1, v%d', vG)
    k.e('v_lshl_add_u32 v5, v6, 1, v5')
    for j in range(3):
        if attn:
            if j == 0:
                k.e('s_mov_b32 s%d, s%d', s_t1, s_wc)
            elif j == 1:
                k.e('s_lshl_b32 s%d, s%d, 2', s_t1, s_wr)
                k.e('s_add_u32 s%d, s%d, s%d', s_t1, s_t1, s_wc)
                k.e('s_add_u32 s%d, s%d, 4', s_t1, s_t1)
            else:
                k.e('s_lshl_b32 s%d, s%d, 2', s_t1, s_wr)
                k.e('s_sub_u32 s%d, s%d, s%d', s_t1, s_wc, s_t1)
                k.e('s_add_u32 s%d, s%d, 8', s_t1, s_t1)
        else:
            k.e('s_mul_i32 s%d, s%d, 3', s_t1, s_wc)
            k.e('s_add_u32 s%d, s%d, %d', s_t1, s_t1, j)
        k.e('v_xor_b32 v6, s%d, v5', s_t1)
        k.e('v_lshl_add_u32 v%d, v6, 5, v4', vB + j)
    vF = 80
    vs, vq, vm, vrr, t0, t1 = 4, 6, 112, 114, 30, 15

    def ln_pass(p, wait):
        k.e('s_waitcnt vmcnt(%d)', wait)
        a = vAD + p * 16
        for i in range(16):
            k.e('v_lshlrev_b32 v%d, 16, v%d', vF + 2 * i, a + i)
            k.e('v_and_b32 v%d, 0xffff0000, v%d', vF + 2 * i + 1, a + i)
        k.e('v_pk_add_f32 %s, %s, %s', vr(vs, 2), vr(vF, 2), vr(vF + 2, 2))
        k.e('v_pk_mul_f32 %s, %s, %s', vr(vq, 2), vr(vF, 2), vr(vF, 2))
        k.e('v_pk_fma_f32 %s, %s, %s, %s', vr(vq, 2), vr(vF + 2, 2), vr(vF + 2, 2), vr(vq, 2))
        for i in range(2, 16):
            k.e('v_pk_add_f32 %s, %s, %s', vr(vs, 2), vr(vs, 2), vr(vF + 2 * i, 2))
            k.e('v_pk_fma_f32 %s, %s, %s, %s', vr(vq, 2), vr(vF + 2 * i, 2), vr(vF + 2 * i, 2), vr(vq, 2))
        k.e('v_add_f32 v%d, v%d, v%d', vs, vs, vs + 1)
        k.e('v_add_f32 v%d, v%d, v%d', vq, vq, vq + 1)
        for sh in (8, 4, 2, 1):
            k.nop(2)
            k.e('v_add_f32_dpp v%d, v%d, v%d row_ror:%d row_mask:0xf bank_mask:0xf', vs, vs, vs, sh)
            k.e('v_add_f32_dpp v%d, v%d, v%d row_ror:%d row_mask:0xf bank_mask:0xf', vq, vq, vq, sh)
        ln_stats(k, vs, vq, 1.0 / 512, vm, vrr, t0, t1)
        k.e('v_sub_f32 v%d, 0, v%d', vm, vm)
        k.e('v_mov_b32 v%d, v%d', vm + 1, vm)
        k.e('v_mov_b32 v%d, v%d', vrr + 1, vrr)
        for i in range(16):
            f = vF + 2 * i
            k.e('v_pk_add_f32 %s, %s, %s', vr(f, 2), vr(f, 2), vr(vm, 2))
            k.e('v_cvt_pk_bf16_f32 v%d, v%d, v%d', a + i, f, f + 1)
            k.e('v_lshlrev_b32 v%d, 16, v%d', f, a + i)
            k.e('v_and_b32 v%d, 0xffff0000, v%d', f + 1, a + i)
            k.e('v_pk_mul_f32 %s, %s, %s', vr(f, 2), vr(f, 2), vr(vrr, 2))
            k.e('v_cvt_pk_bf16_f32 v%d, v%d, v%d', a + i, f, f + 1)
        for q in range(4):
            if p < 2:
                k.e('ds_write_b128 v%d, %s offset:%d', vW0, vr(a + q * 4, 4), p * 32768 + q * 256)
            else:
                k.e('ds_write_b128 v%d, %s offset:%d', vW1, vr(a + q * 4, 4), q * 256)

    if attn:
        l47 = k.newlabel()
        k.e('s_cmp_ge_u32 s%d, 4', s_w)
        k.e('s_cbranch_scc1 %s', l47)
        ln_pass(2, 8)
        k.label(l47)
    ln_pass(0, 4)
    ln_pass(1, 0)
    k.stamp()
    k.e('s_waitcnt lgkmcnt(0)')
    k.e('s_barrier')
    k.stamp()
    FR = [32, 56]
    vACC = 80
    nacc = 7 if attn else 6
    for i in range(nacc * 4):
        k.e('v_mov_b32 v%d, 0', vACC + i)

    def read_list(KS):
        fs = FR[KS & 1]
        kc, ks = KS >> 1, KS & 1
        slot = kc % NS
        a_, b_ = KS >> 2, KS & 3
        rd = []
        rd.append('ds_read_b128 %s, v%d offset:%d' % (vr(fs, 4), vA + b_, a_ * 256))
        for hh in range(2):
            rd.append('ds_read_b64_tr_b16 %s, v%d offset:%d' % (vr(fs + 12 + hh * 2, 2), vB, slot * BST + (ks * 32 + hh * 4) * 384))
        rd.append('ds_read_b128 %s, v%d offset:%d' % (vr(fs + 4, 4), vA + b_, a_ * 256 + 16384))
        for j in range(1, 3):
            for hh in range(2):
                rd.append('ds_read_b64_tr_b16 %s, v%d offset:%d' % (vr(fs + 12 + j * 4 + hh * 2, 2), vB + j,
                                                                   slot * BST + (ks * 32 + hh * 4) * 384))
            if attn and j == 1:
                rd.append('ds_read_b128 %s, v%d offset:%d' % (vr(fs + 8, 4), vH + b_, a_ * 256))
        return rd

    def mfma_list(KS):
        fs = FR[KS & 1]
        out = []
        for j in range(3):
            for r in range(2):
                acc = vACC + (r * 3 + j) * 4
                out.append('v_mfma_f32_16x16x32_bf16 %s, %s, %s, %s' % (vr(acc, 4), vr(fs + 12 + j * 4, 4), vr(fs + r * 4, 4), vr(acc, 4)))
            if attn and j == 1:
                acc = vACC + 24
                out.append('v_mfma_f32_16x16x32_bf16 %s, %s, %s, %s' % (vr(acc, 4), vr(fs + 16, 4), vr(fs + 8, 4), vr(acc, 4)))
        return out

    def interleave(rd, mf):
        n = len(mf)
        i = 0
        for m in range(n):
            want = (m + 1) * len(rd) // max(n - 1, 1)
            k.e(mf[m])
            while i < min(want, len(rd)):
                k.e(rd[i])
                i += 1
        while i < len(rd):
            k.e(rd[i])
            i += 1

    interleave(read_list(0), [])
    for KS in range(16):
        k.e('s_waitcnt lgkmcnt(0)')
        rd = []
        if KS + 1 < 16:
            if (KS + 1) & 1 == 0:
                k.e('s_barrier')
            rd = read_list(KS + 1)
        interleave(rd, mfma_list(KS))
    k.nop(10)
    k.stamp()
    if attn:
        k.e('s_barrier')
        RS = 400
        vE0, vE1, vE2, vEH = 4, 5, 6, 7
        k.e('s_mul_i32 s%d, s%d, %d', s_t0, s_wr, 32 * RS)
        k.e('s_mul_i32 s%d, s%d, 96', s_t1, s_wc)
        k.e('v_mul_u32_u24 v%d, %d, v%d', vEH, RS, vI)
        k.e('v_lshl_add_u32 v%d, v%d, 3, v%d', vEH, vG, vEH)
        k.e('v_add_u32 v%d, s%d, v%d', vEH, s_t1, vEH)
        k.e('s_add_u32 s%d, s%d, %d', s_t0, s_t0, 16 * RS)
        k.e('v_add_u32 v%d, s%d, v%d', vE0, s_t0, vEH)
        k.e('s_lshl_b32 s%d, s%d, 5', s_t1, s_wr)
        k.e('v_add_u32 v%d, s%d, v%d', vE1, s_t1, vE0)
        k.e('v_add_u32 v%d, 32, v%d', vE1, vE1)
        k.e('v_subrev_u32 v%d, s%d, v%d', vE2, s_t1, vE0)
        k.e('v_add_u32 v%d, 64, v%d', vE2, vE2)
        k.e('v_add_u32 v%d, s%d, v%d', vEH, s_t1, vEH)
        k.e('v_add_u32 v%d, 32, v%d', vEH, vEH)
        vP = 32
        n = 0
        for r in range(2):
            for j in range(3):
                acc = vACC + (r * 3 + j) * 4
                pk = vP + 2 * n
                n += 1
                k.e('v_cvt_pk_bf16_f32 v%d, v%d, v%d', pk, acc, acc + 1)
                k.e('v_cvt_pk_bf16_f32 v%d, v%d, v%d', pk + 1, acc + 2, acc + 3)
                k.e('ds_write_b64 v%d, %s offset:%d', (vE0, vE1, vE2)[j], vr(pk, 2), r * 16 * RS)
        pk = vP + 2 * n
        k.e('v_cvt_pk_bf16_f32 v%d, v%d, v%d', pk, vACC + 24, vACC + 25)
        k.e('v_cvt_pk_bf16_f32 v%d, v%d, v%d', pk + 1, vACC + 26, vACC + 27)
        k.e('ds_write_b64 v%d, %s', vEH, vr(pk, 2))
        k.e('s_waitcnt lgkmcnt(0)')
        k.e('s_barrier')
        k.e('s_cmp_ge_u32 s%d, 4', s_w)
        k.e('s_cbranch_scc1 %s', k.endl)
        vb = 4
        k.e('s_mul_i32 s%d, s%d, 96', s_t0, s_w)
        k.e('v_mul_u32_u24 v%d, %d, v%d', vb, RS, vL)
        k.e('v_add_u32 v%d, s%d, v%d', vb, s_t0, vb)
        vQ, vKK = 32, 40
        k.e('ds_read_b128 %s, v%d offset:%d', vr(vQ, 4), vb, 16 * RS)
        k.e('ds_read_b128 %s, v%d offset:%d', vr(vQ + 4, 4), vb, 16 * RS + 16)
        for w in range(8):
            k.e('ds_read_b128 %s, v%d offset:%d', vr(vKK + w * 8, 4), vb, (16 - 2 * w) * RS + 32)
            k.e('ds_read_b128 %s, v%d offset:%d', vr(vKK + w * 8 + 4, 4), vb, (16 - 2 * w) * RS + 48)
        vLG, vS = 8, 5
        k.e('s_lshl_b32 s%d, s%d, 6', s_t0, s_rb)
        k.e('v_add_u32 v%d, s%d, v%d', vS, s_t0, vL)
        k.e('v_mov_b32 v6, 0x%08x', f2u(-1e9))
        for w in range(8):
            k.e('v_mov_b32 v%d, 0', vLG + w)
        for w in range(8):
            k.e('s_waitcnt lgkmcnt(%d)', 14 - 2 * w)
            for d in range(8):
                k.e('v_dot2_f32_bf16 v%d, v%d, v%d, v%d', vLG + w, vQ + d, vKK + w * 8 + d, vLG + w)
        vVV = vKK
        for w in range(8):
            k.e('ds_read_b128 %s, v%d offset:%d', vr(vVV + w * 8, 4), vb, (16 - 2 * w) * RS + 64)
            k.e('ds_read_b128 %s, v%d offset:%d', vr(vVV + w * 8 + 4, 4), vb, (16 - 2 * w) * RS + 80)
        for w in range(8):
            round_bf16(k, vLG + w, vLG + w)
            k.e('v_mul_f32 v%d, 0.25, v%d', vLG + w, vLG + w)
            if w:
                k.e('v_cmp_le_u32 vcc, %d, v%d', 2 * w, vS)
                k.nop(2)
                k.e('v_cndmask_b32 v%d, v6, v%d, vcc', vLG + w, vLG + w)
        k.e('v_max3_f32 v7, v%d, v%d, v%d', vLG, vLG + 1, vLG + 2)
        k.e('v_max3_f32 v7, v7, v%d, v%d', vLG + 3, vLG + 4)
        k.e('v_max3_f32 v7, v7, v%d, v%d', vLG + 5, vLG + 6)
        k.e('v_max_f32 v7, v7, v%d', vLG + 7)
        for w in range(8):
            k.e('v_sub_f32 v%d, v%d, v7', vLG + w, vLG + w)
            k.e('v_mul_f32 v%d, 0x%08x, v%d', vLG + w, f2u(1.4426950408889634), vLG + w)
            k.e('v_exp_f32 v%d, v%d', vLG + w, vLG + w)
        k.nop(1)
        k.e('v_add_f32 v7, v%d, v%d', vLG, vLG + 1)
        for w in range(2, 8):
            k.e('v_add_f32 v7, v7, v%d', vLG + w)
        k.e('v_rcp_f32 v7, v7')
        k.nop(1)
        for w in range(8):
            k.e('v_mul_f32 v%d, v%d, v7', vLG + w, vLG + w)
        vPP = 16
        for w2 in range(4):
            k.e('v_cvt_pk_bf16_f32 v%d, v%d, v%d', vPP + w2, vLG + 2 * w2, vLG + 2 * w2 + 1)
        vO, vT = 104, 20
        k.e('s_mov_b32 s%d, 0x05040100', s_t0)
        k.e('s_mov_b32 s%d, 0x07060302', s_t1)
        for i in range(16):
            k.e('v_mov_b32 v%d, 0', vO + i)
        for w2 in range(4):
            k.e('s_waitcnt lgkmcnt(%d)', 12 - 4 * w2)
            for d in range(8):
                va, vb_ = vVV + (2 * w2) * 8 + d, vVV + (2 * w2 + 1) * 8 + d
                t = vT + 2 * (d & 1)
                k.e('v_perm_b32 v%d, v%d, v%d, s%d', t, vb_, va, s_t0)
                k.e('v_perm_b32 v%d, v%d, v%d, s%d', t + 1, vb_, va, s_t1)
                k.e('v_dot2_f32_bf16 v%d, v%d, v%d, v%d', vO + 2 * d, t, vPP + w2, vO + 2 * d)
                k.e('v_dot2_f32_bf16 v%d, v%d, v%d, v%d', vO + 2 * d + 1, t + 1, vPP + w2, vO + 2 * d + 1)
        k.nop(3)
        vOP = 24
        for i in range(8):
            k.e('v_cvt_pk_bf16_f32 v%d, v%d, v%d', vOP + i, vO + 2 * i, vO + 2 * i + 1)
        k.e('s_lshl_b32 s%d, s%d, 2', s_t0, s_cg)
        k.e('s_add_u32 s%d, s%d, s%d', s_t0, s_t0, s_w)
        k.e('s_lshl_b32 s%d, s%d, 5', s_t0, s_t0)
        k.e('v_lshlrev_b32 v%d, 10, v%d', vS, vS)
        k.e('v_add_u32 v%d, s%d, v%d', vS, s_t0, vS)
        k.e('buffer_store_dwordx4 %s, v%d, s[%d:%d], 0 offen', vr(vOP, 4), vS, SO, SO + 3)
        k.e('buffer_store_dwordx4 %s, v%d, s[%d:%d], 0 offen offset:16', vr(vOP + 4, 4), vS, SO, SO + 3)
    else:
        k.e('s_mov_b32 s%d, 0x%08x', SG_C1, f2u(GELU_C1))
        k.e('v_mov_b32 v%d, 0x%08x', V_C0, f2u(GELU_C0))
        vE = 4
        k.e('s_lshl_b32 s%d, s%d, 6', s_t0, s_rb)
        k.e('s_lshl_b32 s%d, s%d, 5', s_t1, s_wr)
        k.e('s_add_u32 s%d, s%d, s%d', s_t0, s_t0, s_t1)
        k.e('v_add_u32 v%d, s%d, v%d', vE, s_t0, vI)
        k.e('s_mov_b32 s%d, 2752', s_t1)
        k.e('v_mul_lo_u32 v%d, v%d, s%d', vE, vE, s_t1)
        k.e('s_mul_i32 s%d, s%d, 3', s_t0, s_wc)
        k.e('s_add_u32 s%d, s%d, s%d', s_t0, s_t0, s_start)
        k.e('s_lshl_b32 s%d, s%d, 5', s_t0, s_t0)
        k.e('v_lshl_add_u32 v%d, v%d, 3, v%d', vE, vG, vE)
        k.e('v_add_u32 v%d, s%d, v%d', vE, s_t0, vE)
        k.e('s_mov_b32 s%d, %d', s_t1, 16 * 2752)
        for r in range(2):
            for j in range(3):
                acc = vACC + (r * 3 + j) * 4
                pk = 32 + (r * 3 + j) * 2
                k.e('v_cvt_pk_bf16_f32 v%d, v%d, v%d', pk, acc, acc + 1)
                k.e('v_cvt_pk_bf16_f32 v%d, v%d, v%d', pk + 1, acc + 2, acc + 3)
                k.e('v_lshlrev_b32 v%d, 16, v%d', acc, pk)
                k.e('v_and_b32 v%d, 0xffff0000, v%d', acc + 1, pk)
                k.e('v_lshlrev_b32 v%d, 16, v%d', acc + 2, pk + 1)
                k.e('v_and_b32 v%d, 0xffff0000, v%d', acc + 3, pk + 1)
                gelu4(k, acc, 8)
                k.e('v_cvt_pk_bf16_f32 v%d, v%d, v%d', pk, acc, acc + 1)
                k.e('v_cvt_pk_bf16_f32 v%d, v%d, v%d', pk + 1, acc + 2, acc + 3)
                k.e('buffer_store_dwordx2 %s, v%d, s[%d:%d], %s offen offset:%d', vr(pk, 2), vE, SO, SO + 3,
                    ('s%d' % s_t1) if r else '0', j * 32)
    k.stamp()
    if STAMPS:
        k.e('s_waitcnt vmcnt(0)')
    k.stamp()
    k.dump_stamps(s_w)
    k.e('s_branch %s', k.endl)
    k.label(lload)
    if prefetch:
        emit_prefetch(k, prefetch, s_w, 10, vL, 28, s_t0, s_t1, code=CODEPF)
    vBD = 8
    k.e('s_sub_u32 s%d, s%d, 8', s_w, s_w)
    k.e('s_mul_i32 s%d, s%d, 768', s_t0, s_w)
    k.e('s_mov_b32 s%d, 43691', s_t1)
    if attn:
        k.e('s_lshl_b32 s%d, s%d, 7', s_mb, s_cg)
    else:
        k.e('s_lshl_b32 s%d, s%d, 5', s_mb, s_start)
    k.e('s_mov_b32 s%d, %d', s_start, ldb)
    for p in range(12):
        sg, kk, c, t, tmp = 32, 33, 34, 35, 36
        k.e('v_add_u32 v%d, s%d, v%d', sg, s_t0, vL)
        if p:
            k.e('v_add_u32 v%d, %d, v%d', sg, 64 * p, sg)
        k.e('v_mul_lo_u32 v%d, v%d, s%d', kk, sg, s_t1)
        k.e('v_lshrrev_b32 v%d, 20, v%d', kk, kk)
        k.e('v_mul_u32_u24 v%d, 24, v%d', c, kk)
        k.e('v_sub_u32 v%d, v%d, v%d', c, sg, c)
        k.e('v_bfe_u32 v%d, v%d, 1, 1', tmp, kk)
        k.e('v_bfe_u32 v%d, v%d, 3, 1', t, kk)
        k.e('v_lshl_add_u32 v%d, v%d, 1, v%d', tmp, t, tmp)
        k.e('v_lshlrev_b32 v%d, 1, v%d', tmp, tmp)
        k.e('v_xor_b32 v%d, v%d, v%d', c, c, tmp)
        if attn:
            k.e('v_lshrrev_b32 v%d, 3, v%d', t, c)
            k.e('v_and_b32 v%d, 7, v%d', c, c)
            k.e('v_lshlrev_b32 v%d, 4, v%d', c, c)
            k.e('v_lshl_add_u32 v%d, v%d, 10, v%d', sg, t, c)
        else:
            k.e('v_lshlrev_b32 v%d, 4, v%d', sg, c)
        k.e('v_add_u32 v%d, s%d, v%d', sg, s_mb, sg)
        k.e('v_mul_lo_u32 v%d, v%d, s%d', kk, kk, s_start)
        k.e('v_add_u32 v%d, v%d, v%d', vBD + p, kk, sg)
    k.e('s_mul_i32 s%d, s%d, 12288', s_mb, s_w)
    k.e('s_add_u32 s%d, s%d, %d', s_mb, s_mb, B_OFF)
    k.karg_finish(srds_l)

    def issue_dma(kc):
        slot = kc % NS
        k.e('s_mov_b32 s%d, %d', s_t0, kc * 64 * ldb)
        for p in range(12):
            k.e('s_add_u32 m0, s%d, %d', s_mb, slot * BST + p * 1024)
            k.nop(1)
            k.e('buffer_load_dwordx4 v%d, s[%d:%d], s%d offen lds', vBD + p, SB, SB + 3, s_t0)

    k.e('s_barrier')
    for kc in range(NS):
        issue_dma(kc)
    k.e('s_waitcnt vmcnt(24)')
    k.e('s_barrier')
    for kc in range(7):
        last = min(kc + NS - 1, 7)
        k.e('s_waitcnt vmcnt(%d)', 12 * (last - (kc + 1)))
        k.e('s_barrier')
        if kc + NS <= 7:
            issue_dma(kc + NS)
    return k, lds, 120, (704 if prefetch else 640)


def gen_dmagemm(name, mode, asrc, lda, bsrc, ldb, Kdim, osrc, ldo, rsrc, ldr, bias=None, prefetch=None):
    k = K(name)
    BN = 64 if mode == 'res' else 96
    NTW = BN // 32
    BROW = BN * 2
    BST_B = 64 * BROW
    ST = 8192 + BST_B
    NSTG = (Kdim + 63) // 64
    NS = min(NSTG, 163840 // ST)
    lds = NS * ST
    PB = BST_B // 1024 // 4
    NDMA = 2 + PB
    SA, SB, SO, SR, SBI = 4, 8, 12, 16, 20
    s_rb, s_cg, s_w, s_wr, s_wc, s_ma, s_mb, s_t0, s_t1, s_start, s_t2 = 24, 25, 26, 27, 28, 29, 30, 31, 32, 33, 34
    k.e('s_cmp_ge_u32 s2, 256')
    k.e('s_cbranch_scc1 %s', k.endl)
    srds_l = [(SA, asrc), (SB, bsrc)]
    srds_c = [(SO, osrc), (SR, rsrc)] + ([(SBI, bias)] if bias else [])
    k.karg_issue(srds_l + srds_c)
    k.stamp()
    decode_wg(k, s_rb, s_cg)
    vL, vI, vG = 1, 2, 3
    k.e('v_and_b32 v%d, 63, v0', vL)
    k.e('v_lshrrev_b32 v4, 6, v0')
    k.e('v_and_b32 v%d, 15, v0', vI)
    k.e('v_readfirstlane_b32 s%d, v4', s_w)
    k.e('v_bfe_u32 v%d, v0, 4, 2', vG)
    if mode == 'gate':
        k.e('s_mul_i32 s%d, s%d, %d', s_start, s_cg, 37 * 9363)
        k.e('s_lshr_b32 s%d, s%d, 16', s_start, s_start)
    else:
        k.e('s_lshl_b32 s%d, s%d, 2', s_start, s_cg)
    lload = k.newlabel('Lloader')
    k.e('s_cmp_ge_u32 s%d, 4', s_w)
    k.e('s_cbranch_scc1 %s', lload)
    k.e('s_and_b32 s%d, s%d, 1', s_wr, s_w)
    k.e('s_lshr_b32 s%d, s%d, 1', s_wc, s_w)
    vE, vER, vRES, vBI = 16, 17, 32, 48
    k.e('s_lshl_b32 s%d, s%d, 6', s_t0, s_rb)
    k.e('s_lshl_b32 s%d, s%d, 5', s_t1, s_wr)
    k.e('s_add_u32 s%d, s%d, s%d', s_t0, s_t0, s_t1)
    k.e('v_add_u32 v4, s%d, v%d', s_t0, vI)
    k.e('s_mul_i32 s%d, s%d, %d', s_t2, s_wc, NTW)
    k.e('s_add_u32 s%d, s%d, s%d', s_t2, s_t2, s_start)
    k.e('s_lshl_b32 s%d, s%d, 5', s_t2, s_t2)
    k.e('s_mov_b32 s%d, %d', s_t1, ldo)
    k.e('v_mul_lo_u32 v%d, v4, s%d', vE, s_t1)
    k.e('v_lshl_add_u32 v%d, v%d, 3, v%d', vE, vG, vE)
    k.e('v_add_u32 v%d, s%d, v%d', vE, s_t2, vE)
    k.e('s_mov_b32 s%d, %d', s_t1, ldr)
    k.e('v_mul_lo_u32 v%d, v4, s%d', vER, s_t1)
    k.e('v_lshl_add_u32 v%d, v%d, 3, v%d', vER, vG, vER)
    k.e('v_add_u32 v%d, s%d, v%d', vER, s_t2, vER)
    k.e('v_lshlrev_b32 v18, 1, v4')
    s_ro, s_oo = 35, 36
    k.e('s_mov_b32 s%d, %d', s_ro, 16 * ldr)
    k.e('s_mov_b32 s%d, %d', s_oo, 16 * ldo)
    vA, vB, vAc, vBc = 20, 22, 26, 28
    k.e('s_lshl_b32 s%d, s%d, 12', s_t0, s_wr)
    k.e('v_lshrrev_b32 v4, 1, v%d', vI)
    k.e('v_xor_b32 v5, v%d, v4', vG)
    k.e('v_and_b32 v5, 3, v5')
    k.e('v_and_b32 v4, 4, v4')
    for ks in range(2):
        k.e('v_xor_b32 v6, %d, v4', ks << 2)
        k.e('v_or_b32 v6, v6, v5')
        k.e('v_lshlrev_b32 v6, 4, v6')
        k.e('v_lshl_add_u32 v6, v%d, 7, v6', vI)
        k.e('v_add_u32 v%d, s%d, v6', vA + ks, s_t0)
    k.e('v_lshrrev_b32 v4, 2, v%d', vI)
    k.e('v_lshl_add_u32 v4, v%d, 3, v4', vG)
    k.e('v_mul_u32_u24 v4, %d, v4', BROW)
    k.e('v_and_b32 v5, 3, v%d', vI)
    k.e('v_lshl_add_u32 v4, v5, 3, v4')
    k.e('v_add_u32 v4, 0x2000, v4')
    k.e('v_and_b32 v6, 1, v%d', vG)
    k.e('s_mul_i32 s%d, s%d, %d', s_t0, s_wc, NTW)
    if BN == 64:
        k.e('v_bfe_u32 v5, v%d, 3, 1', vI)
        k.e('v_lshl_add_u32 v5, v6, 1, v5')
        for j in range(NTW):
            k.e('s_add_u32 s%d, s%d, %d', s_t1, s_t0, j)
            k.e('v_xor_b32 v7, s%d, v5', s_t1)
            k.e('v_lshl_add_u32 v%d, v7, 5, v4', vB + j)
    else:
        for j in range(NTW):
            k.e('s_add_u32 s%d, s%d, %d', s_t1, s_t0, j)
            k.e('v_add_u32 v7, s%d, v6', s_t1)
            k.e('v_subrev_u32 v13, 6, v7')
            k.e('v_cmp_le_u32 vcc, 6, v7')
            k.nop(2)
            k.e('v_cndmask_b32 v7, v7, v13, vcc')
            k.e('v_lshl_add_u32 v%d, v7, 5, v4', vB + j)
    FSZ = 16 + NTW * 8
    FR = [64, 64 + FSZ]
    vACC = 64 + 2 * FSZ
    for i in range(2 * NTW * 4):
        k.e('v_mov_b32 v%d, 0', vACC + i)
    k.karg_finish(srds_c)
    k.stamp()

    def read_list(kc):
        if NOCONS and mode == 'gate':
            return [], []
        fs = FR[kc & 1]
        sb = (kc % NS) * ST
        pre, rd = [], []
        if sb:
            for ks in range(2):
                pre.append('v_add_u32 v%d, 0x%x, v%d' % (vAc + ks, sb, vA + ks))
            for j in range(NTW):
                pre.append('v_add_u32 v%d, 0x%x, v%d' % (vBc + j, sb, vB + j))
            a_, b_ = vAc, vBc
        else:
            a_, b_ = vA, vB
        for ks in range(2):
            for r in range(2):
                rd.append('ds_read_b128 %s, v%d offset:%d' % (vr(fs + (ks * 2 + r) * 4, 4), a_ + ks, r * 2048))
            for j in range(NTW):
                for hh in range(2):
                    rd.append('ds_read_b64_tr_b16 %s, v%d offset:%d' % (vr(fs + 16 + (ks * NTW + j) * 4 + hh * 2, 2), b_ + j,
                                                                       (ks * 32 + hh * 4) * BROW))
        return pre, rd

    def mfma_list(kc):
        if NOCONS and mode == 'gate':
            return []
        fs = FR[kc & 1]
        out = []
        for ks in range(2):
            for j in range(NTW):
                for r in range(2):
                    acc = vACC + (r * NTW + j) * 4
                    out.append('v_mfma_f32_16x16x32_bf16 %s, %s, %s, %s' % (vr(acc, 4), vr(fs + 16 + (ks * NTW + j) * 4, 4),
                                                                           vr(fs + (ks * 2 + r) * 4, 4), vr(acc, 4)))
        return out

    def interleave(pre, rd, mf):
        for x in pre:
            k.e(x)
        n = len(mf)
        i = 0
        for m in range(n):
            want = (m + 1) * len(rd) // max(n - 2, 1)
            k.e(mf[m])
            while i < min(want, len(rd)):
                k.e(rd[i])
                i += 1
        while i < len(rd):
            k.e(rd[i])
            i += 1

    def epi_loads():
        for r in range(2):
            for j in range(NTW):
                k.e('buffer_load_dwordx2 %s, v%d, s[%d:%d], %s offen offset:%d', vr(vRES + (r * NTW + j) * 2, 2), vER, SR, SR + 3,
                    ('s%d' % s_ro) if r else '0', j * 32)
        if bias:
            k.e('buffer_load_ushort v%d, v18, s[%d:%d], 0 offen', vBI, SBI, SBI + 3)
            k.e('buffer_load_ushort v%d, v18, s[%d:%d], 0 offen offset:32', vBI + 1, SBI, SBI + 3)

    k.e('s_barrier')
    k.stamp()
    pre, rd = read_list(0)
    interleave(pre, rd, [])
    for kc in range(NSTG):
        if kc and kc % 4 == 0:
            k.stamp()
        if kc == max(0, NSTG - 4):
            epi_loads()
        k.e('s_waitcnt lgkmcnt(0)')
        pre, rd = [], []
        if kc + 1 < NSTG:
            k.e('s_barrier')
            pre, rd = read_list(kc + 1)
        interleave(pre, rd, mfma_list(kc))
    k.e('s_waitcnt vmcnt(0)')
    k.nop(8)
    k.stamp()
    for r in range(2):
        if bias:
            k.e('v_lshlrev_b32 v%d, 16, v%d', vBI + r, vBI + r)
        for j in range(NTW):
            acc = vACC + (r * NTW + j) * 4
            rs = vRES + (r * NTW + j) * 2
            k.e('v_cvt_pk_bf16_f32 v8, v%d, v%d', acc, acc + 1)
            k.e('v_cvt_pk_bf16_f32 v9, v%d, v%d', acc + 2, acc + 3)
            k.e('v_lshlrev_b32 v4, 16, v%d', rs)
            k.e('v_and_b32 v5, 0xffff0000, v%d', rs)
            k.e('v_lshlrev_b32 v6, 16, v%d', rs + 1)
            k.e('v_and_b32 v7, 0xffff0000, v%d', rs + 1)
            k.e('v_lshlrev_b32 v%d, 16, v8', acc)
            k.e('v_and_b32 v%d, 0xffff0000, v8', acc + 1)
            k.e('v_lshlrev_b32 v%d, 16, v9', acc + 2)
            k.e('v_and_b32 v%d, 0xffff0000, v9', acc + 3)
            if mode == 'res':
                k.e('v_pk_add_f32 %s, %s, v[4:5]', vr(acc, 2), vr(acc, 2))
                k.e('v_pk_add_f32 %s, %s, v[6:7]', vr(acc + 2, 2), vr(acc + 2, 2))
            else:
                for i in range(4):
                    k.e('v_add_f32 v%d, v%d, v%d', acc + i, acc + i, vBI + r)
                k.e('v_cvt_pk_bf16_f32 v8, v%d, v%d', acc, acc + 1)
                k.e('v_cvt_pk_bf16_f32 v9, v%d, v%d', acc + 2, acc + 3)
                k.e('v_lshlrev_b32 v%d, 16, v8', acc)
                k.e('v_and_b32 v%d, 0xffff0000, v8', acc + 1)
                k.e('v_lshlrev_b32 v%d, 16, v9', acc + 2)
                k.e('v_and_b32 v%d, 0xffff0000, v9', acc + 3)
                k.e('v_pk_mul_f32 %s, %s, v[4:5]', vr(acc, 2), vr(acc, 2))
                k.e('v_pk_mul_f32 %s, %s, v[6:7]', vr(acc + 2, 2), vr(acc + 2, 2))
            k.e('v_cvt_pk_bf16_f32 v%d, v%d, v%d', rs, acc, acc + 1)
            k.e('v_cvt_pk_bf16_f32 v%d, v%d, v%d', rs + 1, acc + 2, acc + 3)
            k.e('buffer_store_dwordx2 %s, v%d, s[%d:%d], %s offen offset:%d', vr(rs, 2), vE, SO, SO + 3,
                ('s%d' % s_oo) if r else '0', j * 32)
    if mode == 'gate':
        lz = k.newlabel()
        k.e('s_cmp_eq_u32 s%d, 7', s_cg)
        k.e('s_cbranch_scc0 %s', lz)
        k.e('s_cmp_eq_u32 s%d, 1', s_wc)
        k.e('s_cbranch_scc0 %s', lz)
        k.e('v_mov_b32 v4, 0')
        k.e('v_mov_b32 v5, 0')
        k.e('buffer_store_dwordx2 v[4:5], v%d, s[%d:%d], 0 offen offset:96', vE, SO, SO + 3)
        k.e('buffer_store_dwordx2 v[4:5], v%d, s[%d:%d], s%d offen offset:96', vE, SO, SO + 3, s_oo)
        k.label(lz)
    k.stamp()
    if STAMPS:
        k.e('s_waitcnt vmcnt(0)')
    k.stamp()
    k.dump_stamps(s_w)
    k.e('s_branch %s', k.endl)
    k.label(lload)
    if prefetch:
        emit_prefetch(k, prefetch, s_w, 8, vL, 40, s_t0, s_t1)
    k.e('s_sub_u32 s%d, s%d, 4', s_w, s_w)
    vAD, vBD = 8, 10
    k.e('v_lshrrev_b32 v4, 3, v%d', vL)
    k.e('v_and_b32 v5, 7, v%d', vL)
    k.e('s_lshl_b32 s%d, s%d, 4', s_t0, s_w)
    k.e('s_mov_b32 s%d, %d', s_t1, lda)
    k.e('s_lshl_b32 s%d, s%d, 6', s_t2, s_rb)
    for p in range(2):
        k.e('v_add_u32 v6, s%d, v4', s_t0)
        if p:
            k.e('v_add_u32 v6, 8, v6')
        k.e('v_bfe_u32 v7, v6, 1, 3')
        k.e('v_xor_b32 v7, v7, v5')
        k.e('v_add_u32 v6, s%d, v6', s_t2)
        k.e('v_mul_lo_u32 v6, v6, s%d', s_t1)
        k.e('v_lshl_add_u32 v%d, v7, 4, v6', vAD + p)
    k.e('s_mov_b32 s%d, %d', s_t1, ldb)
    if BN == 64:
        for p in range(2):
            k.e('v_add_u32 v6, s%d, v4', s_t0)
            if p:
                k.e('v_add_u32 v6, 8, v6')
            k.e('v_bfe_u32 v7, v6, 1, 1')
            k.e('v_bfe_u32 v13, v6, 3, 1')
            k.e('v_lshl_add_u32 v7, v13, 1, v7')
            k.e('v_lshrrev_b32 v13, 1, v5')
            k.e('v_xor_b32 v7, v7, v13')
            k.e('v_add_u32 v7, s%d, v7', s_start)
            k.e('v_lshlrev_b32 v7, 4, v7')
            k.e('v_and_b32 v13, 1, v5')
            k.e('v_lshl_add_u32 v7, v13, 3, v7')
            k.e('v_lshlrev_b32 v7, 1, v7')
            k.e('v_mul_lo_u32 v6, v6, s%d', s_t1)
            k.e('v_add_u32 v%d, v6, v7', vBD + p)
    else:
        k.e('s_mul_i32 s%d, s%d, 3072', s_t0, s_w)
        k.e('s_mul_i32 s%d, s%d, %d', s_t2, s_cg, 2048 * 192)
        k.e('s_add_u32 s%d, s%d, s%d', s_t0, s_t0, s_t2)
        k.e('v_lshlrev_b32 v6, 4, v%d', vL)
        for p in range(3):
            k.e('v_add_u32 v%d, s%d, v6', vBD + p, s_t0)
            if p:
                k.e('v_add_u32 v%d, %d, v%d', vBD + p, 1024 * p, vBD + p)
    k.e('s_lshl_b32 s%d, s%d, 11', s_ma, s_w)
    k.e('s_mul_i32 s%d, s%d, %d', s_mb, s_w, PB * 1024)
    k.e('s_add_u32 s%d, s%d, 8192', s_mb, s_mb)
    k.karg_finish(srds_l)

    s_rot = 37
    if ROT:
        k.e('s_lshr_b32 s%d, s2, 3', s_rot)
        for _ in range((31 // NSTG)):
            k.e('s_cmp_ge_u32 s%d, %d', s_rot, NSTG)
            k.e('s_cselect_b32 s%d, %d, 0', s_t0, NSTG)
            k.e('s_sub_u32 s%d, s%d, s%d', s_rot, s_rot, s_t0)

    def issue_dma(kc):
        if NOLOAD and mode == 'gate':
            return
        slot = kc % NS
        if ROT:
            k.e('s_add_u32 s%d, s%d, %d', s_t2, s_rot, kc)
            k.e('s_cmp_ge_u32 s%d, %d', s_t2, NSTG)
            k.e('s_cselect_b32 s%d, %d, 0', s_t0, NSTG)
            k.e('s_sub_u32 s%d, s%d, s%d', s_t2, s_t2, s_t0)
            k.e('s_lshl_b32 s%d, s%d, 7', s_t0, s_t2)
            k.e('s_mul_i32 s%d, s%d, %d', s_t1, s_t2, 64 * ldb)
        else:
            k.e('s_mov_b32 s%d, %d', s_t0, kc * 128)
            k.e('s_mov_b32 s%d, %d', s_t1, kc * 64 * ldb)
        for p in range(2):
            k.e('s_add_u32 m0, s%d, %d', s_ma, slot * ST + p * 1024)
            k.nop(1)
            k.e('buffer_load_dwordx4 v%d, s[%d:%d], s%d offen lds', vAD + p, SA, SA + 3, s_t0)
        for p in range(PB):
            k.e('s_add_u32 m0, s%d, %d', s_mb, slot * ST + p * 1024)
            k.nop(1)
            k.e('buffer_load_dwordx4 v%d, s[%d:%d], s%d offen lds', vBD + p, SB, SB + 3, s_t1)

    nxt = 0
    for _ in range(min(BURST, NS, NSTG)):
        issue_dma(nxt)
        nxt += 1
    k.e('s_waitcnt vmcnt(%d)', NDMA * (nxt - 1))
    k.e('s_barrier')
    for kc in range(NSTG - 1):
        for _ in range(2):
            if nxt < NSTG and nxt < kc + NS:
                issue_dma(nxt)
                nxt += 1
        k.e('s_waitcnt vmcnt(%d)', NDMA * (nxt - 1 - (kc + 1)))
        k.e('s_barrier')
    return k, lds, vACC + 2 * NTW * 4, (576 if prefetch else 512)


def gen_ln2(name):
    k = K(name)
    k.e('s_cmp_ge_u32 s2, 512')
    k.e('s_cbranch_scc1 %s', k.endl)
    srds = [(4, ('ws', Z_OFF, ZB)), (8, ('ws', Z2N_OFF, Z2T))]
    k.karg_issue(srds)
    k.e('v_and_b32 v1, 63, v0')
    k.e('v_lshrrev_b32 v2, 6, v0')
    k.e('s_lshl_b32 s16, s2, 2')
    k.e('v_add_u32 v2, s16, v2')
    k.e('s_mov_b32 s17, 2752')
    k.e('v_mul_lo_u32 v3, v2, s17')
    k.e('v_lshl_add_u32 v3, v1, 5, v3')
    k.e('v_add_u32 v3, 1376, v3')
    k.e('v_mov_b32 v5, 0x7ffff000')
    k.e('v_cmp_gt_u32 vcc, 43, v1')
    k.nop(2)
    k.e('v_cndmask_b32 v3, v5, v3, vcc')
    k.karg_finish(srds)
    k.e('buffer_load_dwordx4 v[8:11], v3, s[4:7], 0 offen')
    k.e('buffer_load_dwordx4 v[12:15], v3, s[4:7], 0 offen offset:16')
    k.e('v_mul_u32_u24 v4, 7, v1')
    k.e('v_add_u32 v4, 6, v4')
    k.e('v_mul_u32_u24 v4, 1772, v4')
    k.e('v_lshrrev_b32 v4, 16, v4')
    k.e('v_min_u32 v4, 7, v4')
    k.e('v_mul_u32_u24 v6, 192, v2')
    k.e('v_bfe_u32 v7, v2, 3, 1')
    k.e('v_add_u32 v7, v7, v1')
    k.e('s_mov_b32 s17, %d', 37 * 9363)
    k.e('s_mov_b32 s18, %d', 2048 * 192)
    for which, dst in ((0, 42), (1, 43)):
        if which:
            k.e('v_subrev_u32 v4, 1, v4')
        k.e('v_mul_lo_u32 v44, v4, s17')
        k.e('v_lshrrev_b32 v44, 16, v44')
        k.e('v_sub_u32 v45, v7, v44')
        k.e('v_sub_u32 v46, v1, v44')
        k.e('v_subrev_u32 v47, 6, v45')
        k.e('v_cmp_le_u32 vcc, 6, v45')
        k.nop(2)
        k.e('v_cndmask_b32 v45, v45, v47, vcc')
        k.e('v_mul_lo_u32 v47, v4, s18')
        k.e('v_add_u32 v47, v47, v6')
        k.e('v_lshl_add_u32 v%d, v45, 5, v47', dst)
        k.e('v_cmp_gt_u32 vcc, 6, v46')
        k.nop(2)
        k.e('v_cndmask_b32 v%d, v5, v%d, vcc', dst, dst)
        if which:
            k.e('v_cmp_gt_u32 vcc, 8, v4')
            k.nop(2)
            k.e('v_cndmask_b32 v%d, v5, v%d, vcc', dst, dst)
    k.e('v_cmp_gt_u32 vcc, 43, v1')
    k.nop(2)
    k.e('v_cndmask_b32 v42, v5, v42, vcc')
    k.e('v_cndmask_b32 v43, v5, v43, vcc')
    vF = 16
    k.e('s_waitcnt vmcnt(0)')
    for i in range(8):
        k.e('v_lshlrev_b32 v%d, 16, v%d', vF + 2 * i, 8 + i)
        k.e('v_and_b32 v%d, 0xffff0000, v%d', vF + 2 * i + 1, 8 + i)
    k.e('v_pk_add_f32 v[32:33], v[16:17], v[18:19]')
    k.e('v_pk_mul_f32 v[34:35], v[16:17], v[16:17]')
    k.e('v_pk_fma_f32 v[34:35], v[18:19], v[18:19], v[34:35]')
    for i in range(2, 8):
        k.e('v_pk_add_f32 v[32:33], v[32:33], %s', vr(vF + 2 * i, 2))
        k.e('v_pk_fma_f32 v[34:35], %s, %s, v[34:35]', vr(vF + 2 * i, 2), vr(vF + 2 * i, 2))
    k.e('v_add_f32 v32, v32, v33')
    k.e('v_add_f32 v34, v34, v35')
    for sh in (8, 4, 2, 1):
        k.nop(2)
        k.e('v_add_f32_dpp v32, v32, v32 row_ror:%d row_mask:0xf bank_mask:0xf', sh)
        k.e('v_add_f32_dpp v34, v34, v34 row_ror:%d row_mask:0xf bank_mask:0xf', sh)
    k.nop(2)
    for i, ln in enumerate((0, 16, 32)):
        k.e('v_readlane_b32 s%d, v32, %d', 20 + i, ln)
        k.e('v_readlane_b32 s%d, v34, %d', 24 + i, ln)
    k.nop(2)
    k.e('v_mov_b32 v32, s20')
    k.e('v_mov_b32 v34, s24')
    k.e('v_add_f32 v32, s21, v32')
    k.e('v_add_f32 v34, s25, v34')
    k.e('v_add_f32 v32, s22, v32')
    k.e('v_add_f32 v34, s26, v34')
    ln_stats(k, 32, 34, 1.0 / 688, 36, 38, 40, 41)
    k.e('v_sub_f32 v36, 0, v36')
    k.e('v_mov_b32 v37, v36')
    k.e('v_mov_b32 v39, v38')
    for i in range(8):
        f = vF + 2 * i
        k.e('v_pk_add_f32 %s, %s, v[36:37]', vr(f, 2), vr(f, 2))
        k.e('v_cvt_pk_bf16_f32 v%d, v%d, v%d', 8 + i, f, f + 1)
        k.e('v_lshlrev_b32 v%d, 16, v%d', f, 8 + i)
        k.e('v_and_b32 v%d, 0xffff0000, v%d', f + 1, 8 + i)
        k.e('v_pk_mul_f32 %s, %s, v[38:39]', vr(f, 2), vr(f, 2))
        k.e('v_cvt_pk_bf16_f32 v%d, v%d, v%d', 8 + i, f, f + 1)
    for a in (42, 43):
        k.e('buffer_store_dwordx4 v[8:11], v%d, s[8:11], 0 offen', a)
        k.e('buffer_store_dwordx4 v[12:15], v%d, s[8:11], 0 offen offset:16', a)
    return k, 0, 48, 256


def build():
    ws = lambda off, n: ('ws', off, n)
    kern = {}
    kern['k1a_kernel'] = gen_lngemm('k1a_kernel', True, ('A_x', 0, XB), ('wqkv', 0, 512 * 1536 * 2), 3072, ws(O_OFF, XB),
        prefetch=[('wo', 0, 512 * 512 * 2), ('w_in', 0, 512 * 1376 * 2), ('w_sp', 0, S * S * 2), ('w_out', 0, 688 * 512 * 2)])
    kern['k1b_kernel'] = gen_lngemm('k1b_kernel', True, ws(X2_OFF, XB), ('wqkv', 0, 512 * 1536 * 2), 3072, ws(O_OFF, XB))
    kern['k2a_kernel'] = gen_dmagemm('k2a_kernel', 'res', ws(O_OFF, XB), 1024, ('wo', 0, 512 * 512 * 2), 1024, 512,
                                     ws(X1_OFF, XB), 1024, ('A_x', 0, XB), 1024)
    kern['k2b_kernel'] = gen_dmagemm('k2b_kernel', 'res', ws(O_OFF, XB), 1024, ('wo', 0, 512 * 512 * 2), 1024, 512,
                                     ws(X1_OFF, XB), 1024, ws(X2_OFF, XB), 1024)
    kern['k3_kernel'] = gen_lngemm('k3_kernel', False, ws(X1_OFF, XB), ('w_in', 0, 512 * 1376 * 2), 2752, ws(Z_OFF, ZB))
    kern['k3b_kernel'] = gen_ln2('k3b_kernel')
    kern['k4_kernel'] = gen_dmagemm('k4_kernel', 'gate', ('w_sp', 0, S * S * 2), 4096, ws(Z2N_OFF, Z2T), 192, 2048,
                                    ws(H_OFF, HB), LDH, ws(Z_OFF, ZB), 2752, bias=('b_sp', 0, S * 2))
    kern['k5a_kernel'] = gen_dmagemm('k5a_kernel', 'res', ws(H_OFF, HB), LDH, ('w_out', 0, 688 * 512 * 2), 1024, 688,
                                     ws(X2_OFF, XB), 1024, ws(X1_OFF, XB), 1024)
    kern['k5b_kernel'] = gen_dmagemm('k5b_kernel', 'res', ws(H_OFF, HB), LDH, ('w_out', 0, 688 * 512 * 2), 1024, 688,
                                     ('out', 0, XB), 1024, ws(X1_OFF, XB), 1024)
    order = ['k1a_kernel', 'k2a_kernel', 'k3_kernel', 'k3b_kernel', 'k4_kernel', 'k5a_kernel',
             'k1b_kernel', 'k2b_kernel', 'k3_kernel', 'k3b_kernel', 'k4_kernel', 'k5b_kernel']
    hdr = open('interleave_layers__sliding_local_dilated__mixer_gmlp__prompt.s.ref').read().split('\n')
    hdr = [l for l in hdr if l.startswith(';') and '@launch' not in l and 'Override launch' not in l and 'grid=ceil' not in l]
    out = hdr[:]
    for n in order:
        kk, lds, nv, blk = kern[n]
        grid = 512 if n == 'k3b_kernel' else 256
        out.append('; @launch kernel=%s grid=(%d,1,1) block=(%d,1,1) lds=%d' % (n, grid, blk, lds))
    out.append('.amdgcn_target "amdgcn-amd-amdhsa--gfx950"')
    out.append('.text')
    kds = []
    for n, (kk, lds, nv, blk) in kern.items():
        t, kd = kk.text(nv)
        out.append(t)
        kds.append(kd)
    out.append('.Ltext_end:')
    out.append('.section .rodata,"a"')
    out += kds
    return '\n'.join(out)


if __name__ == '__main__':
    dst = sys.argv[1] if len(sys.argv) > 1 else 'interleave_layers__sliding_local_dilated__mixer_gmlp__prompt.s'
    open(dst, 'w').write(build())
```

```python
import sys, os, struct
STAMPS = bool(os.environ.get('STAMPS'))
S, D = 2048, 512
PF3B = bool(os.environ.get('PF3B'))
ROT = bool(os.environ.get('ROT'))
NOCONS = bool(os.environ.get('NOCONS'))
NOLOAD = bool(os.environ.get('NOLOAD'))
BURST = int(os.environ.get('BURST', '4'))
CODEPF = not os.environ.get('NOCODEPF')
F, FH = 1376, 688
MB = 1 << 20
O_OFF, X1_OFF, X2_OFF, Z_OFF, Z2N_OFF, H_OFF = 0, 2 * MB, 4 * MB, 6 * MB, 12 * MB, 16 * MB
XB = S * D * 2
ZB = S * F * 2
Z2T = 8 * S * 192
LDH = 1408
HB = S * LDH
KA = dict(A_x=0, wqkv=8, wo=16, B_x=24, w_in=32, w_sp=40, b_sp=48, w_out=56, out=64, dbg=72, ws=80)


def f2u(f):
    return struct.unpack('<I', struct.pack('<f', f))[0]


def vr(a, n):
    return 'v[%d:%d]' % (a, a + n - 1)


class K:
    def __init__(self, name):
        self.name = name
        self.L = []
        self.lbl = 0
        self.nst = 0
        self.endl = '.Lend_' + name

    def e(self, s, *a):
        self.L.append('  ' + (s % a if a else s))

    def label(self, n):
        self.L.append(n + ':')

    def newlabel(self, p='L'):
        self.lbl += 1
        return '.%s_%s_%d' % (p, self.name, self.lbl)

    def nop(self, n):
        while n > 0:
            m = min(n, 16)
            self.e('s_nop %d', m - 1)
            n -= m

    def stamp(self):
        if not STAMPS:
            return
        i = self.nst
        self.nst += 1
        self.e('s_memtime s[98:99]')
        self.e('s_waitcnt lgkmcnt(0)')
        self.e('s_mov_b32 s%d, s98', 60 + i)

    def dump_stamps(self, s_w):
        if not STAMPS:
            return
        l = self.newlabel()
        l2 = self.newlabel()
        self.e('s_cmp_lg_u32 s%d, 0', s_w)
        self.e('s_cbranch_scc1 %s', l)
        self.e('s_cmp_eq_u32 s2, 0')
        self.e('s_cselect_b32 s97, 0, 128')
        self.e('s_cbranch_scc1 %s', l2)
        self.e('s_cmp_lg_u32 s2, 129')
        self.e('s_cbranch_scc1 %s', l)
        self.label(l2)
        self.e('s_load_dwordx2 s[92:93], s[0:1], 72')
        self.e('s_waitcnt lgkmcnt(0)')
        self.e('s_mov_b32 s94, 256')
        self.e('s_mov_b32 s95, 0x00020000')
        self.e('v_mov_b32 v1, s97')
        for i in range(self.nst):
            self.e('v_mov_b32 v2, s%d', 60 + i)
            self.e('buffer_store_dword v2, v1, s[92:95], 0 offen offset:%d', 4 * i)
            self.nop(2)
        self.label(l)

    def karg_issue(self, srds):
        for sreg, src in srds:
            self.e('s_load_dwordx2 s[%d:%d], s[0:1], %d', sreg, sreg + 1, KA[src[0]])

    def karg_finish(self, srds):
        self.e('s_waitcnt lgkmcnt(0)')
        for sreg, (name, off, nbytes) in srds:
            if off:
                self.e('s_add_u32 s%d, s%d, 0x%x', sreg, sreg, off)
                self.e('s_addc_u32 s%d, s%d, 0', sreg + 1, sreg + 1)
            self.e('s_mov_b32 s%d, 0x%x', sreg + 2, nbytes)
            self.e('s_mov_b32 s%d, 0x00020000', sreg + 3)

    def text(self, nvgpr, nsgpr=100):
        out = ['.globl %s' % self.name, '.p2align 8', '.type %s,@function' % self.name, self.name + ':']
        out += self.L
        out += [self.endl + ':', '  s_endpgm']
        acc = (nvgpr + 3) // 4 * 4
        kd = ['.p2align 6', '.amdhsa_kernel %s' % self.name,
              '  .amdhsa_next_free_vgpr %d' % nvgpr, '  .amdhsa_next_free_sgpr %d' % nsgpr,
              '  .amdhsa_accum_offset %d' % acc, '  .amdhsa_group_segment_fixed_size 0',
              '  .amdhsa_kernarg_size 88', '  .amdhsa_user_sgpr_count 2',
              '  .amdhsa_user_sgpr_kernarg_segment_ptr 1', '  .amdhsa_system_sgpr_workgroup_id_x 1',
              '.end_amdhsa_kernel']
        return '\n'.join(out) + '\n', '\n'.join(kd) + '\n'


def emit_prefetch(k, prefetch, s_w, widx, vL, sbase, s_t0, s_t1, code=False):
    lnp = k.newlabel()
    k.e('s_cmp_lt_u32 s%d, %d', s_w, widx)
    k.e('s_cbranch_scc1 %s', lnp)
    psr = [(sbase + 4 * i, src) for i, src in enumerate(prefetch)]
    k.karg_issue(psr)
    k.e('s_lshl_b32 s%d, s2, 10', s_t0)
    k.e('v_lshlrev_b32 v4, 4, v%d', vL)
    k.e('v_add_u32 v4, s%d, v4', s_t0)
    k.karg_finish(psr)
    n = 0
    for sreg, src in psr:
        for off in range(0, src[2], 256 * 1024):
            k.e('s_mov_b32 s%d, %d', s_t1, off)
            k.e('buffer_load_dwordx4 %s, v4, s[%d:%d], s%d offen', vr(8 + 4 * (n % 16), 4), sreg, sreg + 3, s_t1)
            n += 1
    if code:
        lpc = k.newlabel()
        sc = sbase + 4 * len(prefetch)
        k.e('s_getpc_b64 s[%d:%d]', sc, sc + 1)
        k.label(lpc)
        k.e('s_mov_b32 s%d, .Ltext_end-%s', sc + 2, lpc)
        k.e('s_mov_b32 s%d, 0x00020000', sc + 3)
        k.e('s_lshr_b32 s%d, s2, 3', s_t0)
        k.e('s_lshl_b32 s%d, s%d, 10', s_t0, s_t0)
        k.e('v_lshlrev_b32 v4, 4, v%d', vL)
        k.e('v_add_u32 v4, s%d, v4', s_t0)
        for r in range(5):
            k.e('s_mov_b32 s%d, %d', s_t1, r * 32768)
            k.e('buffer_load_dwordx4 %s, v4, s[%d:%d], s%d offen', vr(8 + 4 * r, 4), sc, sc + 3, s_t1)
    k.e('s_branch %s', k.endl)
    k.label(lnp)


def round_bf16(k, dst, src):
    k.e('v_cvt_pk_bf16_f32 v%d, v%d, v%d', dst, src, src)
    k.e('v_lshlrev_b32 v%d, 16, v%d', dst, dst)


def ln_stats(k, vs, vq, inv_n, vm, vr_, t0, t1):
    k.e('v_mul_f32 v%d, 0x%08x, v%d', vs, f2u(inv_n), vs)
    k.e('v_mul_f32 v%d, 0x%08x, v%d', vq, f2u(inv_n), vq)
    k.e('v_fma_f32 v%d, -v%d, v%d, v%d', vq, vs, vs, vq)
    k.e('v_max_f32 v%d, 0, v%d', vq, vq)
    round_bf16(k, vm, vs)
    round_bf16(k, t0, vq)
    k.e('v_add_f32 v%d, 0x%08x, v%d', t0, f2u(1e-5), t0)
    round_bf16(k, t0, t0)
    k.e('v_sqrt_f32 v%d, v%d', t1, t0)
    k.nop(1)
    round_bf16(k, t1, t1)
    k.e('v_rcp_f32 v%d, v%d', vr_, t1)
    k.nop(1)


def decode_wg(k, s_rb, s_cg):
    k.e('s_and_b32 s%d, s2, 7', s_rb)
    k.e('s_lshl_b32 s%d, s%d, 2', s_rb, s_rb)
    k.e('s_lshr_b32 s%d, s2, 3', s_cg)
    k.e('s_and_b32 s%d, s%d, 3', s_cg, s_cg)
    k.e('s_add_u32 s%d, s%d, s%d', s_rb, s_rb, s_cg)
    k.e('s_lshr_b32 s%d, s2, 5', s_cg)


SG_C1 = 40
V_C0 = 31
GELU_C0 = -2.0 * 0.7978845608028654 * 1.4426950408889634
GELU_C1 = GELU_C0 * 0.044715


def gelu4(k, x, t):
    for i in range(4):
        k.e('v_mul_f32 v%d, v%d, v%d', t + i, x + i, x + i)
    for i in range(4):
        k.e('v_fma_f32 v%d, v%d, s%d, v%d', t + i, t + i, SG_C1, V_C0)
    for i in range(4):
        k.e('v_mul_f32 v%d, v%d, v%d', t + i, t + i, x + i)
    for i in range(4):
        k.e('v_exp_f32 v%d, v%d', t + i, t + i)
    for i in range(4):
        k.e('v_add_f32 v%d, 1.0, v%d', t + i, t + i)
    for i in range(4):
        k.e('v_rcp_f32 v%d, v%d', t + i, t + i)
    for i in range(4):
        k.e('v_mul_f32 v%d, v%d, v%d', x + i, x + i, t + i)


def gen_lngemm(name, attn, xsrc, wsrc, ldb, osrc, prefetch=None):
    k = K(name)
    A_ROWS = 80 if attn else 64
    B_OFF = A_ROWS * 1024
    BST = 24576
    NS = 3
    lds = B_OFF + NS * BST
    SA, SB, SO = 4, 8, 12
    s_rb, s_cg, s_w, s_wr, s_wc, s_mb, s_t0, s_t1, s_start = 16, 17, 18, 19, 20, 21, 22, 23, 24
    k.e('s_cmp_ge_u32 s2, 256')
    k.e('s_cbranch_scc1 %s', k.endl)
    srds_c = [(SA, xsrc), (SO, osrc)]
    srds_l = [(SB, wsrc)]
    k.karg_issue(srds_c + srds_l)
    k.stamp()
    decode_wg(k, s_rb, s_cg)
    vL, vI, vG = 1, 2, 3
    k.e('v_and_b32 v%d, 63, v0', vL)
    k.e('v_lshrrev_b32 v4, 6, v0')
    k.e('v_and_b32 v%d, 15, v0', vI)
    k.e('v_readfirstlane_b32 s%d, v4', s_w)
    k.e('v_bfe_u32 v%d, v0, 4, 2', vG)
    if not attn:
        k.e('s_mul_i32 s%d, s%d, %d', s_start, s_cg, 37 * 9363)
        k.e('s_lshr_b32 s%d, s%d, 16', s_start, s_start)
        k.e('s_lshl_b32 s%d, s%d, 1', s_start, s_start)
    lload = k.newlabel('Lloader')
    k.e('s_cmp_ge_u32 s%d, 8', s_w)
    k.e('s_cbranch_scc1 %s', lload)
    k.e('s_and_b32 s%d, s%d, 1', s_wr, s_w)
    k.e('s_lshr_b32 s%d, s%d, 1', s_wc, s_w)
    vGA, vGH, vW0, vW1 = 11, 12, 13, 14
    k.e('s_lshl_b32 s%d, s%d, 2', s_t0, s_w)
    k.e('v_add_u32 v4, s%d, v%d', s_t0, vG)
    k.e('s_lshl_b32 s%d, s%d, 6', s_t1, s_rb)
    k.e('v_add_u32 v5, s%d, v4', s_t1)
    k.e('v_lshlrev_b32 v5, 10, v5')
    k.e('v_lshl_add_u32 v%d, v%d, 4, v5', vGA, vI)
    k.e('v_subrev_u32 v%d, 0x4000, v%d', vGH, vGA)
    k.e('v_and_b32 v5, 15, v4')
    k.e('v_xor_b32 v5, v5, v%d', vI)
    k.e('v_lshlrev_b32 v5, 4, v5')
    k.e('v_lshl_add_u32 v%d, v4, 10, v5', vW0)
    k.e('v_add_u32 v%d, 0x10000, v%d', vW1, vW0)
    k.karg_finish(srds_c)
    vAD = 32
    k.e('s_mov_b32 s%d, 0x8000', s_t1)
    lskip = k.newlabel()
    if attn:
        k.e('s_cmp_ge_u32 s%d, 4', s_w)
        k.e('s_cbranch_scc1 %s', lskip)
        for q in range(4):
            k.e('buffer_load_dwordx4 %s, v%d, s[%d:%d], 0 offen offset:%d', vr(vAD + 32 + q * 4, 4), vGH, SA, SA + 3, q * 256)
        k.label(lskip)
    for p in range(2):
        for q in range(4):
            k.e('buffer_load_dwordx4 %s, v%d, s[%d:%d], %s offen offset:%d', vr(vAD + p * 16 + q * 4, 4), vGA, SA, SA + 3,
                ('s%d' % s_t1) if p else '0', q * 256)
    k.e('s_barrier')
    k.stamp()
    vA, vH, vB = 16, 20, 24
    k.e('s_lshl_b32 s%d, s%d, 15', s_t0, s_wr)
    k.e('v_xor_b32 v4, v%d, v%d', vG, vI)
    k.e('v_and_b32 v4, 3, v4')
    k.e('v_and_b32 v5, 12, v%d', vI)
    for b in range(4):
        k.e('v_xor_b32 v6, %d, v5', b << 2)
        k.e('v_or_b32 v6, v6, v4')
        k.e('v_lshlrev_b32 v6, 4, v6')
        k.e('v_lshl_add_u32 v6, v%d, 10, v6', vI)
        k.e('v_add_u32 v%d, s%d, v6', vA + b, s_t0)
        if attn:
            k.e('v_add_u32 v%d, 0x10000, v6', vH + b)
    k.e('v_lshrrev_b32 v4, 2, v%d', vI)
    k.e('v_lshl_add_u32 v4, v%d, 3, v4', vG)
    k.e('v_mul_u32_u24 v4, 384, v4')
    k.e('v_and_b32 v5, 3, v%d', vI)
    k.e('v_lshl_add_u32 v4, v5, 3, v4')
    k.e('v_add_u32 v4, %d, v4', B_OFF)
    k.e('v_bfe_u32 v5, v%d, 3, 1', vI)
    k.e('v_and_b32 v6, 1, v%d', vG)
    k.e('v_lshl_add_u32 v5, v6, 1, v5')
    for j in range(3):
        if attn:
            if j == 0:
                k.e('s_mov_b32 s%d, s%d', s_t1, s_wc)
            elif j == 1:
                k.e('s_lshl_b32 s%d, s%d, 2', s_t1, s_wr)
                k.e('s_add_u32 s%d, s%d, s%d', s_t1, s_t1, s_wc)
                k.e('s_add_u32 s%d, s%d, 4', s_t1, s_t1)
            else:
                k.e('s_lshl_b32 s%d, s%d, 2', s_t1, s_wr)
                k.e('s_sub_u32 s%d, s%d, s%d', s_t1, s_wc, s_t1)
                k.e('s_add_u32 s%d, s%d, 8', s_t1, s_t1)
        else:
            k.e('s_mul_i32 s%d, s%d, 3', s_t1, s_wc)
            k.e('s_add_u32 s%d, s%d, %d', s_t1, s_t1, j)
        k.e('v_xor_b32 v6, s%d, v5', s_t1)
        k.e('v_lshl_add_u32 v%d, v6, 5, v4', vB + j)
    vF = 80
    vs, vq, vm, vrr, t0, t1 = 4, 6, 112, 114, 30, 15

    def ln_pass(p, wait):
        k.e('s_waitcnt vmcnt(%d)', wait)
        a = vAD + p * 16
        for i in range(16):
            k.e('v_lshlrev_b32 v%d, 16, v%d', vF + 2 * i, a + i)
            k.e('v_and_b32 v%d, 0xffff0000, v%d', vF + 2 * i + 1, a + i)
        k.e('v_pk_add_f32 %s, %s, %s', vr(vs, 2), vr(vF, 2), vr(vF + 2, 2))
        k.e('v_pk_mul_f32 %s, %s, %s', vr(vq, 2), vr(vF, 2), vr(vF, 2))
        k.e('v_pk_fma_f32 %s, %s, %s, %s', vr(vq, 2), vr(vF + 2, 2), vr(vF + 2, 2), vr(vq, 2))
        for i in range(2, 16):
            k.e('v_pk_add_f32 %s, %s, %s', vr(vs, 2), vr(vs, 2), vr(vF + 2 * i, 2))
            k.e('v_pk_fma_f32 %s, %s, %s, %s', vr(vq, 2), vr(vF + 2 * i, 2), vr(vF + 2 * i, 2), vr(vq, 2))
        k.e('v_add_f32 v%d, v%d, v%d', vs, vs, vs + 1)
        k.e('v_add_f32 v%d, v%d, v%d', vq, vq, vq + 1)
        for sh in (8, 4, 2, 1):
            k.nop(2)
            k.e('v_add_f32_dpp v%d, v%d, v%d row_ror:%d row_mask:0xf bank_mask:0xf', vs, vs, vs, sh)
            k.e('v_add_f32_dpp v%d, v%d, v%d row_ror:%d row_mask:0xf bank_mask:0xf', vq, vq, vq, sh)
        ln_stats(k, vs, vq, 1.0 / 512, vm, vrr, t0, t1)
        k.e('v_sub_f32 v%d, 0, v%d', vm, vm)
        k.e('v_mov_b32 v%d, v%d', vm + 1, vm)
        k.e('v_mov_b32 v%d, v%d', vrr + 1, vrr)
        for i in range(16):
            f = vF + 2 * i
            k.e('v_pk_add_f32 %s, %s, %s', vr(f, 2), vr(f, 2), vr(vm, 2))
            k.e('v_cvt_pk_bf16_f32 v%d, v%d, v%d', a + i, f, f + 1)
            k.e('v_lshlrev_b32 v%d, 16, v%d', f, a + i)
            k.e('v_and_b32 v%d, 0xffff0000, v%d', f + 1, a + i)
            k.e('v_pk_mul_f32 %s, %s, %s', vr(f, 2), vr(f, 2), vr(vrr, 2))
            k.e('v_cvt_pk_bf16_f32 v%d, v%d, v%d', a + i, f, f + 1)
        for q in range(4):
            if p < 2:
                k.e('ds_write_b128 v%d, %s offset:%d', vW0, vr(a + q * 4, 4), p * 32768 + q * 256)
            else:
                k.e('ds_write_b128 v%d, %s offset:%d', vW1, vr(a + q * 4, 4), q * 256)

    if attn:
        l47 = k.newlabel()
        k.e('s_cmp_ge_u32 s%d, 4', s_w)
        k.e('s_cbranch_scc1 %s', l47)
        ln_pass(2, 8)
        k.label(l47)
    ln_pass(0, 4)
    ln_pass(1, 0)
    k.stamp()
    k.e('s_waitcnt lgkmcnt(0)')
    k.e('s_barrier')
    k.stamp()
    FR = [32, 56]
    vACC = 80
    nacc = 7 if attn else 6
    for i in range(nacc * 4):
        k.e('v_mov_b32 v%d, 0', vACC + i)

    def read_list(KS):
        fs = FR[KS & 1]
        kc, ks = KS >> 1, KS & 1
        slot = kc % NS
        a_, b_ = KS >> 2, KS & 3
        rd = []
        rd.append('ds_read_b128 %s, v%d offset:%d' % (vr(fs, 4), vA + b_, a_ * 256))
        for hh in range(2):
            rd.append('ds_read_b64_tr_b16 %s, v%d offset:%d' % (vr(fs + 12 + hh * 2, 2), vB, slot * BST + (ks * 32 + hh * 4) * 384))
        rd.append('ds_read_b128 %s, v%d offset:%d' % (vr(fs + 4, 4), vA + b_, a_ * 256 + 16384))
        for j in range(1, 3):
            for hh in range(2):
                rd.append('ds_read_b64_tr_b16 %s, v%d offset:%d' % (vr(fs + 12 + j * 4 + hh * 2, 2), vB + j,
                                                                   slot * BST + (ks * 32 + hh * 4) * 384))
            if attn and j == 1:
                rd.append('ds_read_b128 %s, v%d offset:%d' % (vr(fs + 8, 4), vH + b_, a_ * 256))
        return rd

    def mfma_list(KS):
        fs = FR[KS & 1]
        out = []
        for j in range(3):
            for r in range(2):
                acc = vACC + (r * 3 + j) * 4
                out.append('v_mfma_f32_16x16x32_bf16 %s, %s, %s, %s' % (vr(acc, 4), vr(fs + 12 + j * 4, 4), vr(fs + r * 4, 4), vr(acc, 4)))
            if attn and j == 1:
                acc = vACC + 24
                out.append('v_mfma_f32_16x16x32_bf16 %s, %s, %s, %s' % (vr(acc, 4), vr(fs + 16, 4), vr(fs + 8, 4), vr(acc, 4)))
        return out

    def interleave(rd, mf):
        n = len(mf)
        i = 0
        for m in range(n):
            want = (m + 1) * len(rd) // max(n - 1, 1)
            k.e(mf[m])
            while i < min(want, len(rd)):
                k.e(rd[i])
                i += 1
        while i < len(rd):
            k.e(rd[i])
            i += 1

    interleave(read_list(0), [])
    for KS in range(16):
        k.e('s_waitcnt lgkmcnt(0)')
        rd = []
        if KS + 1 < 16:
            if (KS + 1) & 1 == 0:
                k.e('s_barrier')
            rd = read_list(KS + 1)
        interleave(rd, mfma_list(KS))
    k.nop(10)
    k.stamp()
    if attn:
        k.e('s_barrier')
        RS = 400
        vE0, vE1, vE2, vEH = 4, 5, 6, 7
        k.e('s_mul_i32 s%d, s%d, %d', s_t0, s_wr, 32 * RS)
        k.e('s_mul_i32 s%d, s%d, 96', s_t1, s_wc)
        k.e('v_mul_u32_u24 v%d, %d, v%d', vEH, RS, vI)
        k.e('v_lshl_add_u32 v%d, v%d, 3, v%d', vEH, vG, vEH)
        k.e('v_add_u32 v%d, s%d, v%d', vEH, s_t1, vEH)
        k.e('s_add_u32 s%d, s%d, %d', s_t0, s_t0, 16 * RS)
        k.e('v_add_u32 v%d, s%d, v%d', vE0, s_t0, vEH)
        k.e('s_lshl_b32 s%d, s%d, 5', s_t1, s_wr)
        k.e('v_add_u32 v%d, s%d, v%d', vE1, s_t1, vE0)
        k.e('v_add_u32 v%d, 32, v%d', vE1, vE1)
        k.e('v_subrev_u32 v%d, s%d, v%d', vE2, s_t1, vE0)
        k.e('v_add_u32 v%d, 64, v%d', vE2, vE2)
        k.e('v_add_u32 v%d, s%d, v%d', vEH, s_t1, vEH)
        k.e('v_add_u32 v%d, 32, v%d', vEH, vEH)
        vP = 32
        n = 0
        for r in range(2):
            for j in range(3):
                acc = vACC + (r * 3 + j) * 4
                pk = vP + 2 * n
                n += 1
                k.e('v_cvt_pk_bf16_f32 v%d, v%d, v%d', pk, acc, acc + 1)
                k.e('v_cvt_pk_bf16_f32 v%d, v%d, v%d', pk + 1, acc + 2, acc + 3)
                k.e('ds_write_b64 v%d, %s offset:%d', (vE0, vE1, vE2)[j], vr(pk, 2), r * 16 * RS)
        pk = vP + 2 * n
        k.e('v_cvt_pk_bf16_f32 v%d, v%d, v%d', pk, vACC + 24, vACC + 25)
        k.e('v_cvt_pk_bf16_f32 v%d, v%d, v%d', pk + 1, vACC + 26, vACC + 27)
        k.e('ds_write_b64 v%d, %s', vEH, vr(pk, 2))
        k.e('s_waitcnt lgkmcnt(0)')
        k.e('s_barrier')
        k.e('s_cmp_ge_u32 s%d, 4', s_w)
        k.e('s_cbranch_scc1 %s', k.endl)
        vb = 4
        k.e('s_mul_i32 s%d, s%d, 96', s_t0, s_w)
        k.e('v_mul_u32_u24 v%d, %d, v%d', vb, RS, vL)
        k.e('v_add_u32 v%d, s%d, v%d', vb, s_t0, vb)
        vQ, vKK = 32, 40
        k.e('ds_read_b128 %s, v%d offset:%d', vr(vQ, 4), vb, 16 * RS)
        k.e('ds_read_b128 %s, v%d offset:%d', vr(vQ + 4, 4), vb, 16 * RS + 16)
        for w in range(8):
            k.e('ds_read_b128 %s, v%d offset:%d', vr(vKK + w * 8, 4), vb, (16 - 2 * w) * RS + 32)
            k.e('ds_read_b128 %s, v%d offset:%d', vr(vKK + w * 8 + 4, 4), vb, (16 - 2 * w) * RS + 48)
        vLG, vS = 8, 5
        k.e('s_lshl_b32 s%d, s%d, 6', s_t0, s_rb)
        k.e('v_add_u32 v%d, s%d, v%d', vS, s_t0, vL)
        k.e('v_mov_b32 v6, 0x%08x', f2u(-1e9))
        for w in range(8):
            k.e('v_mov_b32 v%d, 0', vLG + w)
        for w in range(8):
            k.e('s_waitcnt lgkmcnt(%d)', 14 - 2 * w)
            for d in range(8):
                k.e('v_dot2_f32_bf16 v%d, v%d, v%d, v%d', vLG + w, vQ + d, vKK + w * 8 + d, vLG + w)
        vVV = vKK
        for w in range(8):
            k.e('ds_read_b128 %s, v%d offset:%d', vr(vVV + w * 8, 4), vb, (16 - 2 * w) * RS + 64)
            k.e('ds_read_b128 %s, v%d offset:%d', vr(vVV + w * 8 + 4, 4), vb, (16 - 2 * w) * RS + 80)
        for w in range(8):
            round_bf16(k, vLG + w, vLG + w)
            k.e('v_mul_f32 v%d, 0.25, v%d', vLG + w, vLG + w)
            if w:
                k.e('v_cmp_le_u32 vcc, %d, v%d', 2 * w, vS)
                k.nop(2)
                k.e('v_cndmask_b32 v%d, v6, v%d, vcc', vLG + w, vLG + w)
        k.e('v_max3_f32 v7, v%d, v%d, v%d', vLG, vLG + 1, vLG + 2)
        k.e('v_max3_f32 v7, v7, v%d, v%d', vLG + 3, vLG + 4)
        k.e('v_max3_f32 v7, v7, v%d, v%d', vLG + 5, vLG + 6)
        k.e('v_max_f32 v7, v7, v%d', vLG + 7)
        for w in range(8):
            k.e('v_sub_f32 v%d, v%d, v7', vLG + w, vLG + w)
            k.e('v_mul_f32 v%d, 0x%08x, v%d', vLG + w, f2u(1.4426950408889634), vLG + w)
            k.e('v_exp_f32 v%d, v%d', vLG + w, vLG + w)
        k.nop(1)
        k.e('v_add_f32 v7, v%d, v%d', vLG, vLG + 1)
        for w in range(2, 8):
            k.e('v_add_f32 v7, v7, v%d', vLG + w)
        k.e('v_rcp_f32 v7, v7')
        k.nop(1)
        for w in range(8):
            k.e('v_mul_f32 v%d, v%d, v7', vLG + w, vLG + w)
        vPP = 16
        for w2 in range(4):
            k.e('v_cvt_pk_bf16_f32 v%d, v%d, v%d', vPP + w2, vLG + 2 * w2, vLG + 2 * w2 + 1)
        vO, vT = 104, 20
        k.e('s_mov_b32 s%d, 0x05040100', s_t0)
        k.e('s_mov_b32 s%d, 0x07060302', s_t1)
        for i in range(16):
            k.e('v_mov_b32 v%d, 0', vO + i)
        for w2 in range(4):
            k.e('s_waitcnt lgkmcnt(%d)', 12 - 4 * w2)
            for d in range(8):
                va, vb_ = vVV + (2 * w2) * 8 + d, vVV + (2 * w2 + 1) * 8 + d
                t = vT + 2 * (d & 1)
                k.e('v_perm_b32 v%d, v%d, v%d, s%d', t, vb_, va, s_t0)
                k.e('v_perm_b32 v%d, v%d, v%d, s%d', t + 1, vb_, va, s_t1)
                k.e('v_dot2_f32_bf16 v%d, v%d, v%d, v%d', vO + 2 * d, t, vPP + w2, vO + 2 * d)
                k.e('v_dot2_f32_bf16 v%d, v%d, v%d, v%d', vO + 2 * d + 1, t + 1, vPP + w2, vO + 2 * d + 1)
        k.nop(3)
        vOP = 24
        for i in range(8):
            k.e('v_cvt_pk_bf16_f32 v%d, v%d, v%d', vOP + i, vO + 2 * i, vO + 2 * i + 1)
        k.e('s_lshl_b32 s%d, s%d, 2', s_t0, s_cg)
        k.e('s_add_u32 s%d, s%d, s%d', s_t0, s_t0, s_w)
        k.e('s_lshl_b32 s%d, s%d, 5', s_t0, s_t0)
        k.e('v_lshlrev_b32 v%d, 10, v%d', vS, vS)
        k.e('v_add_u32 v%d, s%d, v%d', vS, s_t0, vS)
        k.e('buffer_store_dwordx4 %s, v%d, s[%d:%d], 0 offen', vr(vOP, 4), vS, SO, SO + 3)
        k.e('buffer_store_dwordx4 %s, v%d, s[%d:%d], 0 offen offset:16', vr(vOP + 4, 4), vS, SO, SO + 3)
    else:
        k.e('s_mov_b32 s%d, 0x%08x', SG_C1, f2u(GELU_C1))
        k.e('v_mov_b32 v%d, 0x%08x', V_C0, f2u(GELU_C0))
        vE = 4
        k.e('s_lshl_b32 s%d, s%d, 6', s_t0, s_rb)
        k.e('s_lshl_b32 s%d, s%d, 5', s_t1, s_wr)
        k.e('s_add_u32 s%d, s%d, s%d', s_t0, s_t0, s_t1)
        k.e('v_add_u32 v%d, s%d, v%d', vE, s_t0, vI)
        k.e('s_mov_b32 s%d, 2752', s_t1)
        k.e('v_mul_lo_u32 v%d, v%d, s%d', vE, vE, s_t1)
        k.e('s_mul_i32 s%d, s%d, 3', s_t0, s_wc)
        k.e('s_add_u32 s%d, s%d, s%d', s_t0, s_t0, s_start)
        k.e('s_lshl_b32 s%d, s%d, 5', s_t0, s_t0)
        k.e('v_lshl_add_u32 v%d, v%d, 3, v%d', vE, vG, vE)
        k.e('v_add_u32 v%d, s%d, v%d', vE, s_t0, vE)
        k.e('s_mov_b32 s%d, %d', s_t1, 16 * 2752)
        for r in range(2):
            for j in range(3):
                acc = vACC + (r * 3 + j) * 4
                pk = 32 + (r * 3 + j) * 2
                k.e('v_cvt_pk_bf16_f32 v%d, v%d, v%d', pk, acc, acc + 1)
                k.e('v_cvt_pk_bf16_f32 v%d, v%d, v%d', pk + 1, acc + 2, acc + 3)
                k.e('v_lshlrev_b32 v%d, 16, v%d', acc, pk)
                k.e('v_and_b32 v%d, 0xffff0000, v%d', acc + 1, pk)
                k.e('v_lshlrev_b32 v%d, 16, v%d', acc + 2, pk + 1)
                k.e('v_and_b32 v%d, 0xffff0000, v%d', acc + 3, pk + 1)
                gelu4(k, acc, 8)
                k.e('v_cvt_pk_bf16_f32 v%d, v%d, v%d', pk, acc, acc + 1)
                k.e('v_cvt_pk_bf16_f32 v%d, v%d, v%d', pk + 1, acc + 2, acc + 3)
                k.e('buffer_store_dwordx2 %s, v%d, s[%d:%d], %s offen offset:%d', vr(pk, 2), vE, SO, SO + 3,
                    ('s%d' % s_t1) if r else '0', j * 32)
    k.stamp()
    if STAMPS:
        k.e('s_waitcnt vmcnt(0)')
    k.stamp()
    k.dump_stamps(s_w)
    k.e('s_branch %s', k.endl)
    k.label(lload)
    if prefetch:
        emit_prefetch(k, prefetch, s_w, 10, vL, 28, s_t0, s_t1, code=CODEPF)
    vBD = 8
    k.e('s_sub_u32 s%d, s%d, 8', s_w, s_w)
    k.e('s_mul_i32 s%d, s%d, 768', s_t0, s_w)
    k.e('s_mov_b32 s%d, 43691', s_t1)
    if attn:
        k.e('s_lshl_b32 s%d, s%d, 7', s_mb, s_cg)
    else:
        k.e('s_lshl_b32 s%d, s%d, 5', s_mb, s_start)
    k.e('s_mov_b32 s%d, %d', s_start, ldb)
    for p in range(12):
        sg, kk, c, t, tmp = 32, 33, 34, 35, 36
        k.e('v_add_u32 v%d, s%d, v%d', sg, s_t0, vL)
        if p:
            k.e('v_add_u32 v%d, %d, v%d', sg, 64 * p, sg)
        k.e('v_mul_lo_u32 v%d, v%d, s%d', kk, sg, s_t1)
        k.e('v_lshrrev_b32 v%d, 20, v%d', kk, kk)
        k.e('v_mul_u32_u24 v%d, 24, v%d', c, kk)
        k.e('v_sub_u32 v%d, v%d, v%d', c, sg, c)
        k.e('v_bfe_u32 v%d, v%d, 1, 1', tmp, kk)
        k.e('v_bfe_u32 v%d, v%d, 3, 1', t, kk)
        k.e('v_lshl_add_u32 v%d, v%d, 1, v%d', tmp, t, tmp)
        k.e('v_lshlrev_b32 v%d, 1, v%d', tmp, tmp)
        k.e('v_xor_b32 v%d, v%d, v%d', c, c, tmp)
        if attn:
            k.e('v_lshrrev_b32 v%d, 3, v%d', t, c)
            k.e('v_and_b32 v%d, 7, v%d', c, c)
            k.e('v_lshlrev_b32 v%d, 4, v%d', c, c)
            k.e('v_lshl_add_u32 v%d, v%d, 10, v%d', sg, t, c)
        else:
            k.e('v_lshlrev_b32 v%d, 4, v%d', sg, c)
        k.e('v_add_u32 v%d, s%d, v%d', sg, s_mb, sg)
        k.e('v_mul_lo_u32 v%d, v%d, s%d', kk, kk, s_start)
        k.e('v_add_u32 v%d, v%d, v%d', vBD + p, kk, sg)
    k.e('s_mul_i32 s%d, s%d, 12288', s_mb, s_w)
    k.e('s_add_u32 s%d, s%d, %d', s_mb, s_mb, B_OFF)
    k.karg_finish(srds_l)

    def issue_dma(kc):
        slot = kc % NS
        k.e('s_mov_b32 s%d, %d', s_t0, kc * 64 * ldb)
        for p in range(12):
            k.e('s_add_u32 m0, s%d, %d', s_mb, slot * BST + p * 1024)
            k.nop(1)
            k.e('buffer_load_dwordx4 v%d, s[%d:%d], s%d offen lds', vBD + p, SB, SB + 3, s_t0)

    k.e('s_barrier')
    for kc in range(NS):
        issue_dma(kc)
    k.e('s_waitcnt vmcnt(24)')
    k.e('s_barrier')
    for kc in range(7):
        last = min(kc + NS - 1, 7)
        k.e('s_waitcnt vmcnt(%d)', 12 * (last - (kc + 1)))
        k.e('s_barrier')
        if kc + NS <= 7:
            issue_dma(kc + NS)
    return k, lds, 120, (704 if prefetch else 640)


def gen_dmagemm(name, mode, asrc, lda, bsrc, ldb, Kdim, osrc, ldo, rsrc, ldr, bias=None, prefetch=None):
    k = K(name)
    BN = 64 if mode == 'res' else 96
    NTW = BN // 32
    BROW = BN * 2
    BST_B = 64 * BROW
    ST = 8192 + BST_B
    NSTG = (Kdim + 63) // 64
    NS = min(NSTG, 163840 // ST)
    lds = NS * ST
    PB = BST_B // 1024 // 4
    NDMA = 2 + PB
    SA, SB, SO, SR, SBI = 4, 8, 12, 16, 20
    s_rb, s_cg, s_w, s_wr, s_wc, s_ma, s_mb, s_t0, s_t1, s_start, s_t2 = 24, 25, 26, 27, 28, 29, 30, 31, 32, 33, 34
    k.e('s_cmp_ge_u32 s2, 256')
    k.e('s_cbranch_scc1 %s', k.endl)
    srds_l = [(SA, asrc), (SB, bsrc)]
    srds_c = [(SO, osrc), (SR, rsrc)] + ([(SBI, bias)] if bias else [])
    k.karg_issue(srds_l + srds_c)
    k.stamp()
    decode_wg(k, s_rb, s_cg)
    vL, vI, vG = 1, 2, 3
    k.e('v_and_b32 v%d, 63, v0', vL)
    k.e('v_lshrrev_b32 v4, 6, v0')
    k.e('v_and_b32 v%d, 15, v0', vI)
    k.e('v_readfirstlane_b32 s%d, v4', s_w)
    k.e('v_bfe_u32 v%d, v0, 4, 2', vG)
    if mode == 'gate':
        k.e('s_mul_i32 s%d, s%d, %d', s_start, s_cg, 37 * 9363)
        k.e('s_lshr_b32 s%d, s%d, 16', s_start, s_start)
    else:
        k.e('s_lshl_b32 s%d, s%d, 2', s_start, s_cg)
    lload = k.newlabel('Lloader')
    k.e('s_cmp_ge_u32 s%d, 4', s_w)
    k.e('s_cbranch_scc1 %s', lload)
    k.e('s_and_b32 s%d, s%d, 1', s_wr, s_w)
    k.e('s_lshr_b32 s%d, s%d, 1', s_wc, s_w)
    vE, vER, vRES, vBI = 16, 17, 32, 48
    k.e('s_lshl_b32 s%d, s%d, 6', s_t0, s_rb)
    k.e('s_lshl_b32 s%d, s%d, 5', s_t1, s_wr)
    k.e('s_add_u32 s%d, s%d, s%d', s_t0, s_t0, s_t1)
    k.e('v_add_u32 v4, s%d, v%d', s_t0, vI)
    k.e('s_mul_i32 s%d, s%d, %d', s_t2, s_wc, NTW)
    k.e('s_add_u32 s%d, s%d, s%d', s_t2, s_t2, s_start)
    k.e('s_lshl_b32 s%d, s%d, 5', s_t2, s_t2)
    k.e('s_mov_b32 s%d, %d', s_t1, ldo)
    k.e('v_mul_lo_u32 v%d, v4, s%d', vE, s_t1)
    k.e('v_lshl_add_u32 v%d, v%d, 3, v%d', vE, vG, vE)
    k.e('v_add_u32 v%d, s%d, v%d', vE, s_t2, vE)
    k.e('s_mov_b32 s%d, %d', s_t1, ldr)
    k.e('v_mul_lo_u32 v%d, v4, s%d', vER, s_t1)
    k.e('v_lshl_add_u32 v%d, v%d, 3, v%d', vER, vG, vER)
    k.e('v_add_u32 v%d, s%d, v%d', vER, s_t2, vER)
    k.e('v_lshlrev_b32 v18, 1, v4')
    s_ro, s_oo = 35, 36
    k.e('s_mov_b32 s%d, %d', s_ro, 16 * ldr)
    k.e('s_mov_b32 s%d, %d', s_oo, 16 * ldo)
    vA, vB, vAc, vBc = 20, 22, 26, 28
    k.e('s_lshl_b32 s%d, s%d, 12', s_t0, s_wr)
    k.e('v_lshrrev_b32 v4, 1, v%d', vI)
    k.e('v_xor_b32 v5, v%d, v4', vG)
    k.e('v_and_b32 v5, 3, v5')
    k.e('v_and_b32 v4, 4, v4')
    for ks in range(2):
        k.e('v_xor_b32 v6, %d, v4', ks << 2)
        k.e('v_or_b32 v6, v6, v5')
        k.e('v_lshlrev_b32 v6, 4, v6')
        k.e('v_lshl_add_u32 v6, v%d, 7, v6', vI)
        k.e('v_add_u32 v%d, s%d, v6', vA + ks, s_t0)
    k.e('v_lshrrev_b32 v4, 2, v%d', vI)
    k.e('v_lshl_add_u32 v4, v%d, 3, v4', vG)
    k.e('v_mul_u32_u24 v4, %d, v4', BROW)
    k.e('v_and_b32 v5, 3, v%d', vI)
    k.e('v_lshl_add_u32 v4, v5, 3, v4')
    k.e('v_add_u32 v4, 0x2000, v4')
    k.e('v_and_b32 v6, 1, v%d', vG)
    k.e('s_mul_i32 s%d, s%d, %d', s_t0, s_wc, NTW)
    if BN == 64:
        k.e('v_bfe_u32 v5, v%d, 3, 1', vI)
        k.e('v_lshl_add_u32 v5, v6, 1, v5')
        for j in range(NTW):
            k.e('s_add_u32 s%d, s%d, %d', s_t1, s_t0, j)
            k.e('v_xor_b32 v7, s%d, v5', s_t1)
            k.e('v_lshl_add_u32 v%d, v7, 5, v4', vB + j)
    else:
        for j in range(NTW):
            k.e('s_add_u32 s%d, s%d, %d', s_t1, s_t0, j)
            k.e('v_add_u32 v7, s%d, v6', s_t1)
            k.e('v_subrev_u32 v13, 6, v7')
            k.e('v_cmp_le_u32 vcc, 6, v7')
            k.nop(2)
            k.e('v_cndmask_b32 v7, v7, v13, vcc')
            k.e('v_lshl_add_u32 v%d, v7, 5, v4', vB + j)
    FSZ = 16 + NTW * 8
    FR = [64, 64 + FSZ]
    vACC = 64 + 2 * FSZ
    for i in range(2 * NTW * 4):
        k.e('v_mov_b32 v%d, 0', vACC + i)
    k.karg_finish(srds_c)
    k.stamp()

    def read_list(kc):
        if NOCONS and mode == 'gate':
            return [], []
        fs = FR[kc & 1]
        sb = (kc % NS) * ST
        pre, rd = [], []
        if sb:
            for ks in range(2):
                pre.append('v_add_u32 v%d, 0x%x, v%d' % (vAc + ks, sb, vA + ks))
            for j in range(NTW):
                pre.append('v_add_u32 v%d, 0x%x, v%d' % (vBc + j, sb, vB + j))
            a_, b_ = vAc, vBc
        else:
            a_, b_ = vA, vB
        for ks in range(2):
            for r in range(2):
                rd.append('ds_read_b128 %s, v%d offset:%d' % (vr(fs + (ks * 2 + r) * 4, 4), a_ + ks, r * 2048))
            for j in range(NTW):
                for hh in range(2):
                    rd.append('ds_read_b64_tr_b16 %s, v%d offset:%d' % (vr(fs + 16 + (ks * NTW + j) * 4 + hh * 2, 2), b_ + j,
                                                                       (ks * 32 + hh * 4) * BROW))
        return pre, rd

    def mfma_list(kc):
        if NOCONS and mode == 'gate':
            return []
        fs = FR[kc & 1]
        out = []
        for ks in range(2):
            for j in range(NTW):
                for r in range(2):
                    acc = vACC + (r * NTW + j) * 4
                    out.append('v_mfma_f32_16x16x32_bf16 %s, %s, %s, %s' % (vr(acc, 4), vr(fs + 16 + (ks * NTW + j) * 4, 4),
                                                                           vr(fs + (ks * 2 + r) * 4, 4), vr(acc, 4)))
        return out

    def interleave(pre, rd, mf):
        for x in pre:
            k.e(x)
        n = len(mf)
        i = 0
        for m in range(n):
            want = (m + 1) * len(rd) // max(n - 2, 1)
            k.e(mf[m])
            while i < min(want, len(rd)):
                k.e(rd[i])
                i += 1
        while i < len(rd):
            k.e(rd[i])
            i += 1

    def epi_loads():
        for r in range(2):
            for j in range(NTW):
                k.e('buffer_load_dwordx2 %s, v%d, s[%d:%d], %s offen offset:%d', vr(vRES + (r * NTW + j) * 2, 2), vER, SR, SR + 3,
                    ('s%d' % s_ro) if r else '0', j * 32)
        if bias:
            k.e('buffer_load_ushort v%d, v18, s[%d:%d], 0 offen', vBI, SBI, SBI + 3)
            k.e('buffer_load_ushort v%d, v18, s[%d:%d], 0 offen offset:32', vBI + 1, SBI, SBI + 3)

    k.e('s_barrier')
    k.stamp()
    pre, rd = read_list(0)
    interleave(pre, rd, [])
    for kc in range(NSTG):
        if kc and kc % 4 == 0:
            k.stamp()
        if kc == max(0, NSTG - 4):
            epi_loads()
        k.e('s_waitcnt lgkmcnt(0)')
        pre, rd = [], []
        if kc + 1 < NSTG:
            k.e('s_barrier')
            pre, rd = read_list(kc + 1)
        interleave(pre, rd, mfma_list(kc))
    k.e('s_waitcnt vmcnt(0)')
    k.nop(8)
    k.stamp()
    for r in range(2):
        if bias:
            k.e('v_lshlrev_b32 v%d, 16, v%d', vBI + r, vBI + r)
        for j in range(NTW):
            acc = vACC + (r * NTW + j) * 4
            rs = vRES + (r * NTW + j) * 2
            k.e('v_cvt_pk_bf16_f32 v8, v%d, v%d', acc, acc + 1)
            k.e('v_cvt_pk_bf16_f32 v9, v%d, v%d', acc + 2, acc + 3)
            k.e('v_lshlrev_b32 v4, 16, v%d', rs)
            k.e('v_and_b32 v5, 0xffff0000, v%d', rs)
            k.e('v_lshlrev_b32 v6, 16, v%d', rs + 1)
            k.e('v_and_b32 v7, 0xffff0000, v%d', rs + 1)
            k.e('v_lshlrev_b32 v%d, 16, v8', acc)
            k.e('v_and_b32 v%d, 0xffff0000, v8', acc + 1)
            k.e('v_lshlrev_b32 v%d, 16, v9', acc + 2)
            k.e('v_and_b32 v%d, 0xffff0000, v9', acc + 3)
            if mode == 'res':
                k.e('v_pk_add_f32 %s, %s, v[4:5]', vr(acc, 2), vr(acc, 2))
                k.e('v_pk_add_f32 %s, %s, v[6:7]', vr(acc + 2, 2), vr(acc + 2, 2))
            else:
                for i in range(4):
                    k.e('v_add_f32 v%d, v%d, v%d', acc + i, acc + i, vBI + r)
                k.e('v_cvt_pk_bf16_f32 v8, v%d, v%d', acc, acc + 1)
                k.e('v_cvt_pk_bf16_f32 v9, v%d, v%d', acc + 2, acc + 3)
                k.e('v_lshlrev_b32 v%d, 16, v8', acc)
                k.e('v_and_b32 v%d, 0xffff0000, v8', acc + 1)
                k.e('v_lshlrev_b32 v%d, 16, v9', acc + 2)
                k.e('v_and_b32 v%d, 0xffff0000, v9', acc + 3)
                k.e('v_pk_mul_f32 %s, %s, v[4:5]', vr(acc, 2), vr(acc, 2))
                k.e('v_pk_mul_f32 %s, %s, v[6:7]', vr(acc + 2, 2), vr(acc + 2, 2))
            k.e('v_cvt_pk_bf16_f32 v%d, v%d, v%d', rs, acc, acc + 1)
            k.e('v_cvt_pk_bf16_f32 v%d, v%d, v%d', rs + 1, acc + 2, acc + 3)
            k.e('buffer_store_dwordx2 %s, v%d, s[%d:%d], %s offen offset:%d', vr(rs, 2), vE, SO, SO + 3,
                ('s%d' % s_oo) if r else '0', j * 32)
    if mode == 'gate':
        lz = k.newlabel()
        k.e('s_cmp_eq_u32 s%d, 7', s_cg)
        k.e('s_cbranch_scc0 %s', lz)
        k.e('s_cmp_eq_u32 s%d, 1', s_wc)
        k.e('s_cbranch_scc0 %s', lz)
        k.e('v_mov_b32 v4, 0')
        k.e('v_mov_b32 v5, 0')
        k.e('buffer_store_dwordx2 v[4:5], v%d, s[%d:%d], 0 offen offset:96', vE, SO, SO + 3)
        k.e('buffer_store_dwordx2 v[4:5], v%d, s[%d:%d], s%d offen offset:96', vE, SO, SO + 3, s_oo)
        k.label(lz)
    k.stamp()
    if STAMPS:
        k.e('s_waitcnt vmcnt(0)')
    k.stamp()
    k.dump_stamps(s_w)
    k.e('s_branch %s', k.endl)
    k.label(lload)
    if prefetch:
        emit_prefetch(k, prefetch, s_w, 8, vL, 40, s_t0, s_t1)
    k.e('s_sub_u32 s%d, s%d, 4', s_w, s_w)
    vAD, vBD = 8, 10
    k.e('v_lshrrev_b32 v4, 3, v%d', vL)
    k.e('v_and_b32 v5, 7, v%d', vL)
    k.e('s_lshl_b32 s%d, s%d, 4', s_t0, s_w)
    k.e('s_mov_b32 s%d, %d', s_t1, lda)
    k.e('s_lshl_b32 s%d, s%d, 6', s_t2, s_rb)
    for p in range(2):
        k.e('v_add_u32 v6, s%d, v4', s_t0)
        if p:
            k.e('v_add_u32 v6, 8, v6')
        k.e('v_bfe_u32 v7, v6, 1, 3')
        k.e('v_xor_b32 v7, v7, v5')
        k.e('v_add_u32 v6, s%d, v6', s_t2)
        k.e('v_mul_lo_u32 v6, v6, s%d', s_t1)
        k.e('v_lshl_add_u32 v%d, v7, 4, v6', vAD + p)
    k.e('s_mov_b32 s%d, %d', s_t1, ldb)
    if BN == 64:
        for p in range(2):
            k.e('v_add_u32 v6, s%d, v4', s_t0)
            if p:
                k.e('v_add_u32 v6, 8, v6')
            k.e('v_bfe_u32 v7, v6, 1, 1')
            k.e('v_bfe_u32 v13, v6, 3, 1')
            k.e('v_lshl_add_u32 v7, v13, 1, v7')
            k.e('v_lshrrev_b32 v13, 1, v5')
            k.e('v_xor_b32 v7, v7, v13')
            k.e('v_add_u32 v7, s%d, v7', s_start)
            k.e('v_lshlrev_b32 v7, 4, v7')
            k.e('v_and_b32 v13, 1, v5')
            k.e('v_lshl_add_u32 v7, v13, 3, v7')
            k.e('v_lshlrev_b32 v7, 1, v7')
            k.e('v_mul_lo_u32 v6, v6, s%d', s_t1)
            k.e('v_add_u32 v%d, v6, v7', vBD + p)
    else:
        k.e('s_mul_i32 s%d, s%d, 3072', s_t0, s_w)
        k.e('s_mul_i32 s%d, s%d, %d', s_t2, s_cg, 2048 * 192)
        k.e('s_add_u32 s%d, s%d, s%d', s_t0, s_t0, s_t2)
        k.e('v_lshlrev_b32 v6, 4, v%d', vL)
        for p in range(3):
            k.e('v_add_u32 v%d, s%d, v6', vBD + p, s_t0)
            if p:
                k.e('v_add_u32 v%d, %d, v%d', vBD + p, 1024 * p, vBD + p)
    k.e('s_lshl_b32 s%d, s%d, 11', s_ma, s_w)
    k.e('s_mul_i32 s%d, s%d, %d', s_mb, s_w, PB * 1024)
    k.e('s_add_u32 s%d, s%d, 8192', s_mb, s_mb)
    k.karg_finish(srds_l)

    s_rot = 37
    if ROT:
        k.e('s_lshr_b32 s%d, s2, 3', s_rot)
        for _ in range((31 // NSTG)):
            k.e('s_cmp_ge_u32 s%d, %d', s_rot, NSTG)
            k.e('s_cselect_b32 s%d, %d, 0', s_t0, NSTG)
            k.e('s_sub_u32 s%d, s%d, s%d', s_rot, s_rot, s_t0)

    def issue_dma(kc):
        if NOLOAD and mode == 'gate':
            return
        slot = kc % NS
        if ROT:
            k.e('s_add_u32 s%d, s%d, %d', s_t2, s_rot, kc)
            k.e('s_cmp_ge_u32 s%d, %d', s_t2, NSTG)
            k.e('s_cselect_b32 s%d, %d, 0', s_t0, NSTG)
            k.e('s_sub_u32 s%d, s%d, s%d', s_t2, s_t2, s_t0)
            k.e('s_lshl_b32 s%d, s%d, 7', s_t0, s_t2)
            k.e('s_mul_i32 s%d, s%d, %d', s_t1, s_t2, 64 * ldb)
        else:
            k.e('s_mov_b32 s%d, %d', s_t0, kc * 128)
            k.e('s_mov_b32 s%d, %d', s_t1, kc * 64 * ldb)
        for p in range(2):
            k.e('s_add_u32 m0, s%d, %d', s_ma, slot * ST + p * 1024)
            k.nop(1)
            k.e('buffer_load_dwordx4 v%d, s[%d:%d], s%d offen lds', vAD + p, SA, SA + 3, s_t0)
        for p in range(PB):
            k.e('s_add_u32 m0, s%d, %d', s_mb, slot * ST + p * 1024)
            k.nop(1)
            k.e('buffer_load_dwordx4 v%d, s[%d:%d], s%d offen lds', vBD + p, SB, SB + 3, s_t1)

    nxt = 0
    for _ in range(min(BURST, NS, NSTG)):
        issue_dma(nxt)
        nxt += 1
    k.e('s_waitcnt vmcnt(%d)', NDMA * (nxt - 1))
    k.e('s_barrier')
    for kc in range(NSTG - 1):
        for _ in range(2):
            if nxt < NSTG and nxt < kc + NS:
                issue_dma(nxt)
                nxt += 1
        k.e('s_waitcnt vmcnt(%d)', NDMA * (nxt - 1 - (kc + 1)))
        k.e('s_barrier')
    return k, lds, vACC + 2 * NTW * 4, (576 if prefetch else 512)


def gen_ln2(name):
    k = K(name)
    k.e('s_cmp_ge_u32 s2, 512')
    k.e('s_cbranch_scc1 %s', k.endl)
    srds = [(4, ('ws', Z_OFF, ZB)), (8, ('ws', Z2N_OFF, Z2T))]
    if PF3B:
        srds.append((12, ('w_sp', 0, S * S * 2)))
    k.karg_issue(srds)
    k.e('v_and_b32 v1, 63, v0')
    k.e('v_lshrrev_b32 v2, 6, v0')
    k.e('s_lshl_b32 s16, s2, 2')
    k.e('v_add_u32 v2, s16, v2')
    k.e('s_mov_b32 s17, 2752')
    k.e('v_mul_lo_u32 v3, v2, s17')
    k.e('v_lshl_add_u32 v3, v1, 5, v3')
    k.e('v_add_u32 v3, 1376, v3')
    k.e('v_mov_b32 v5, 0x7ffff000')
    k.e('v_cmp_gt_u32 vcc, 43, v1')
    k.nop(2)
    k.e('v_cndmask_b32 v3, v5, v3, vcc')
    k.karg_finish(srds)
    k.e('buffer_load_dwordx4 v[8:11], v3, s[4:7], 0 offen')
    k.e('buffer_load_dwordx4 v[12:15], v3, s[4:7], 0 offen offset:16')
    if PF3B:
        k.e('s_and_b32 s19, s2, 7')
        k.e('s_lshl_b32 s19, s19, 20')
        k.e('s_lshr_b32 s18, s2, 3')
        k.e('s_lshl_b32 s18, s18, 14')
        k.e('s_add_u32 s19, s19, s18')
        k.e('v_lshlrev_b32 v48, 4, v0')
        for r in range(4):
            k.e('buffer_load_dwordx4 v[%d:%d], v48, s[12:15], s19 offen', 52 + 4 * r, 55 + 4 * r)
            k.e('s_add_u32 s19, s19, 4096')
    k.e('v_mul_u32_u24 v4, 7, v1')
    k.e('v_add_u32 v4, 6, v4')
    k.e('v_mul_u32_u24 v4, 1772, v4')
    k.e('v_lshrrev_b32 v4, 16, v4')
    k.e('v_min_u32 v4, 7, v4')
    k.e('v_mul_u32_u24 v6, 192, v2')
    k.e('v_bfe_u32 v7, v2, 3, 1')
    k.e('v_add_u32 v7, v7, v1')
    k.e('s_mov_b32 s17, %d', 37 * 9363)
    k.e('s_mov_b32 s18, %d', 2048 * 192)
    for which, dst in ((0, 42), (1, 43)):
        if which:
            k.e('v_subrev_u32 v4, 1, v4')
        k.e('v_mul_lo_u32 v44, v4, s17')
        k.e('v_lshrrev_b32 v44, 16, v44')
        k.e('v_sub_u32 v45, v7, v44')
        k.e('v_sub_u32 v46, v1, v44')
        k.e('v_subrev_u32 v47, 6, v45')
        k.e('v_cmp_le_u32 vcc, 6, v45')
        k.nop(2)
        k.e('v_cndmask_b32 v45, v45, v47, vcc')
        k.e('v_mul_lo_u32 v47, v4, s18')
        k.e('v_add_u32 v47, v47, v6')
        k.e('v_lshl_add_u32 v%d, v45, 5, v47', dst)
        k.e('v_cmp_gt_u32 vcc, 6, v46')
        k.nop(2)
        k.e('v_cndmask_b32 v%d, v5, v%d, vcc', dst, dst)
        if which:
            k.e('v_cmp_gt_u32 vcc, 8, v4')
            k.nop(2)
            k.e('v_cndmask_b32 v%d, v5, v%d, vcc', dst, dst)
    k.e('v_cmp_gt_u32 vcc, 43, v1')
    k.nop(2)
    k.e('v_cndmask_b32 v42, v5, v42, vcc')
    k.e('v_cndmask_b32 v43, v5, v43, vcc')
    vF = 16
    k.e('s_waitcnt vmcnt(%d)', 4 if PF3B else 0)
    for i in range(8):
        k.e('v_lshlrev_b32 v%d, 16, v%d', vF + 2 * i, 8 + i)
        k.e('v_and_b32 v%d, 0xffff0000, v%d', vF + 2 * i + 1, 8 + i)
    k.e('v_pk_add_f32 v[32:33], v[16:17], v[18:19]')
    k.e('v_pk_mul_f32 v[34:35], v[16:17], v[16:17]')
    k.e('v_pk_fma_f32 v[34:35], v[18:19], v[18:19], v[34:35]')
    for i in range(2, 8):
        k.e('v_pk_add_f32 v[32:33], v[32:33], %s', vr(vF + 2 * i, 2))
        k.e('v_pk_fma_f32 v[34:35], %s, %s, v[34:35]', vr(vF + 2 * i, 2), vr(vF + 2 * i, 2))
    k.e('v_add_f32 v32, v32, v33')
    k.e('v_add_f32 v34, v34, v35')
    for sh in (8, 4, 2, 1):
        k.nop(2)
        k.e('v_add_f32_dpp v32, v32, v32 row_ror:%d row_mask:0xf bank_mask:0xf', sh)
        k.e('v_add_f32_dpp v34, v34, v34 row_ror:%d row_mask:0xf bank_mask:0xf', sh)
    k.nop(2)
    for i, ln in enumerate((0, 16, 32)):
        k.e('v_readlane_b32 s%d, v32, %d', 20 + i, ln)
        k.e('v_readlane_b32 s%d, v34, %d', 24 + i, ln)
    k.nop(2)
    k.e('v_mov_b32 v32, s20')
    k.e('v_mov_b32 v34, s24')
    k.e('v_add_f32 v32, s21, v32')
    k.e('v_add_f32 v34, s25, v34')
    k.e('v_add_f32 v32, s22, v32')
    k.e('v_add_f32 v34, s26, v34')
    ln_stats(k, 32, 34, 1.0 / 688, 36, 38, 40, 41)
    k.e('v_sub_f32 v36, 0, v36')
    k.e('v_mov_b32 v37, v36')
    k.e('v_mov_b32 v39, v38')
    for i in range(8):
        f = vF + 2 * i
        k.e('v_pk_add_f32 %s, %s, v[36:37]', vr(f, 2), vr(f, 2))
        k.e('v_cvt_pk_bf16_f32 v%d, v%d, v%d', 8 + i, f, f + 1)
        k.e('v_lshlrev_b32 v%d, 16, v%d', f, 8 + i)
        k.e('v_and_b32 v%d, 0xffff0000, v%d', f + 1, 8 + i)
        k.e('v_pk_mul_f32 %s, %s, v[38:39]', vr(f, 2), vr(f, 2))
        k.e('v_cvt_pk_bf16_f32 v%d, v%d, v%d', 8 + i, f, f + 1)
    for a in (42, 43):
        k.e('buffer_store_dwordx4 v[8:11], v%d, s[8:11], 0 offen', a)
        k.e('buffer_store_dwordx4 v[12:15], v%d, s[8:11], 0 offen offset:16', a)
    return k, 0, 72, 256


def build():
    ws = lambda off, n: ('ws', off, n)
    kern = {}
    kern['k1a_kernel'] = gen_lngemm('k1a_kernel', True, ('A_x', 0, XB), ('wqkv', 0, 512 * 1536 * 2), 3072, ws(O_OFF, XB),
        prefetch=[('wo', 0, 512 * 512 * 2), ('w_in', 0, 512 * 1376 * 2), ('w_sp', 0, S * S * 2), ('w_out', 0, 688 * 512 * 2)])
    kern['k1b_kernel'] = gen_lngemm('k1b_kernel', True, ws(X2_OFF, XB), ('wqkv', 0, 512 * 1536 * 2), 3072, ws(O_OFF, XB))
    kern['k2a_kernel'] = gen_dmagemm('k2a_kernel', 'res', ws(O_OFF, XB), 1024, ('wo', 0, 512 * 512 * 2), 1024, 512,
                                     ws(X1_OFF, XB), 1024, ('A_x', 0, XB), 1024)
    kern['k2b_kernel'] = gen_dmagemm('k2b_kernel', 'res', ws(O_OFF, XB), 1024, ('wo', 0, 512 * 512 * 2), 1024, 512,
                                     ws(X1_OFF, XB), 1024, ws(X2_OFF, XB), 1024)
    kern['k3_kernel'] = gen_lngemm('k3_kernel', False, ws(X1_OFF, XB), ('w_in', 0, 512 * 1376 * 2), 2752, ws(Z_OFF, ZB))
    kern['k3b_kernel'] = gen_ln2('k3b_kernel')
    kern['k4_kernel'] = gen_dmagemm('k4_kernel', 'gate', ('w_sp', 0, S * S * 2), 4096, ws(Z2N_OFF, Z2T), 192, 2048,
                                    ws(H_OFF, HB), LDH, ws(Z_OFF, ZB), 2752, bias=('b_sp', 0, S * 2))
    kern['k5a_kernel'] = gen_dmagemm('k5a_kernel', 'res', ws(H_OFF, HB), LDH, ('w_out', 0, 688 * 512 * 2), 1024, 688,
                                     ws(X2_OFF, XB), 1024, ws(X1_OFF, XB), 1024)
    kern['k5b_kernel'] = gen_dmagemm('k5b_kernel', 'res', ws(H_OFF, HB), LDH, ('w_out', 0, 688 * 512 * 2), 1024, 688,
                                     ('out', 0, XB), 1024, ws(X1_OFF, XB), 1024)
    order = ['k1a_kernel', 'k2a_kernel', 'k3_kernel', 'k3b_kernel', 'k4_kernel', 'k5a_kernel',
             'k1b_kernel', 'k2b_kernel', 'k3_kernel', 'k3b_kernel', 'k4_kernel', 'k5b_kernel']
    hdr = open('interleave_layers__sliding_local_dilated__mixer_gmlp__prompt.s.ref').read().split('\n')
    hdr = [l for l in hdr if l.startswith(';') and '@launch' not in l and 'Override launch' not in l and 'grid=ceil' not in l]
    out = hdr[:]
    for n in order:
        kk, lds, nv, blk = kern[n]
        grid = 512 if n == 'k3b_kernel' else 256
        out.append('; @launch kernel=%s grid=(%d,1,1) block=(%d,1,1) lds=%d' % (n, grid, blk, lds))
    out.append('.amdgcn_target "amdgcn-amd-amdhsa--gfx950"')
    out.append('.text')
    kds = []
    for n, (kk, lds, nv, blk) in kern.items():
        t, kd = kk.text(nv)
        out.append(t)
        kds.append(kd)
    out.append('.Ltext_end:')
    out.append('.section .rodata,"a"')
    out += kds
    return '\n'.join(out)


if __name__ == '__main__':
    dst = sys.argv[1] if len(sys.argv) > 1 else 'interleave_layers__sliding_local_dilated__mixer_gmlp__prompt.s'
    open(dst, 'w').write(build())
```
